```python
import torch

def _softmax(x, axis=-1):
    return torch.softmax(x, dim=axis)

def _gelu(x):
    return torch.nn.functional.gelu(x, approximate='tanh')

def _silu(x):
    return torch.nn.functional.silu(x)

def _sigmoid(x):
    return torch.sigmoid(x)

def _layernorm(x, axis=-1, eps=1e-05):
    m = x.mean(dim=axis, keepdim=True)
    v = x.var(dim=axis, keepdim=True, unbiased=False)
    return (x - m) / torch.sqrt(v + eps)

def _scatter_add(tgt, idx, src, axis=0):
    return tgt.clone().index_add_(axis, idx, src)

def _segment_sum(src, seg, n):
    out = torch.zeros((n,) + src.shape[1:], dtype=src.dtype)
    return out.index_add_(0, seg, src)

def _pad(x, pw):
    flat = tuple((v for pair in reversed(pw) for v in pair))
    return torch.nn.functional.pad(x, flat)
kernel_name = 'parallel_sum__mha_block__mixer_gmlp__prompt'

def setup_inputs():

    _w = lambda a: (lambda t: t.to(torch.bfloat16) if t.is_floating_point() else t)(torch.as_tensor(a))

    def _A_setup():
        B, S, D, H = (1, 2048, 576, 32)
        return {'x': _w((lambda *s: torch.randn(*s, dtype=torch.bfloat16) * 0.05)(B, S, D)), 'wqkv': _w((lambda *s: torch.randn(*s, dtype=torch.bfloat16) * 0.2)(D, 3 * D)), 'wo': _w((lambda *s: torch.randn(*s, dtype=torch.bfloat16) * 0.1)(D, D))}
    _A_in = _A_setup()

    def _B_setup():
        B, S, D, F = (1, 2048, 576, 4608)
        Fh = F // 2
        return {'x': _w((lambda *s: torch.randn(*s, dtype=torch.bfloat16) * 0.05)(B, S, D)), 'w_in': _w((lambda *s: torch.randn(*s, dtype=torch.bfloat16) * 0.8)(D, 2 * Fh)), 'w_sp': _w(0.01 * (lambda *s: torch.randn(*s, dtype=torch.bfloat16) * 0.8)(S, S)), 'b_sp': _w(1.0 + 0.01 * (lambda *s: torch.randn(*s, dtype=torch.bfloat16) * 0.1)(S)), 'w_out': _w((lambda *s: torch.randn(*s, dtype=torch.bfloat16) * 0.1)(Fh, D))}
    _B_in = _B_setup()
    return {'A_x': _A_in['x'], 'A_wqkv': _A_in['wqkv'], 'A_wo': _A_in['wo'], 'B_x': _B_in['x'], 'B_w_in': _B_in['w_in'], 'B_w_sp': _B_in['w_sp'], 'B_b_sp': _B_in['b_sp'], 'B_w_out': _B_in['w_out']}

def reference(A_x, A_wqkv, A_wo, B_x, B_w_in, B_w_sp, B_b_sp, B_w_out):

    def _A_ref(x, wqkv, wo):
        B, S, D = x.shape
        H = 32
        Dh = D // H
        qkv = (lambda x, *d: x.permute(*d))((x @ wqkv).reshape(B, S, 3, H, Dh), 2, 0, 3, 1, 4)
        q, k, v = (qkv[0], qkv[1], qkv[2])
        scores = torch.einsum('bhqd,bhkd->bhqk', q, k) * Dh ** (-0.5)
        p = _softmax(scores, axis=-1)
        o = torch.einsum('bhqk,bhkd->bhqd', p, v)
        return (lambda x, *d: x.permute(*d))(o, 0, 2, 1, 3).reshape(B, S, D) @ wo

    def _B_ref(x, w_in, w_sp, b_sp, w_out):
        B, S, D = x.shape
        F = w_in.shape[-1]
        Fh = F // 2
        z = _gelu(torch.einsum('bsd,df->bsf', x, w_in))
        z1 = z[..., :Fh].clone()
        z2 = _layernorm(z[..., Fh:], axis=-1)
        g = torch.einsum('ts,bsf->btf', w_sp, z2) + b_sp[None, :, None]
        return torch.einsum('bsf,fd->bsd', z1 * g, w_out)
    x = A_x
    xn = _layernorm(x, axis=-1)
    return x + _A_ref(xn, A_wqkv, A_wo) + _B_ref(xn, B_w_in, B_w_sp, B_b_sp, B_w_out)
```

```python
import re


class Asm:
    def __init__(self):
        self.lines = []

    def I(self, s):
        for ln in s.split("\n"):
            ln = ln.strip()
            if ln:
                self.lines.append("    " + ln)

    def L(self, name):
        self.lines.append(name + ":")

    def raw(self, s):
        self.lines.append(s)

    def extend(self, items):
        for it in items:
            self.I(it)

    def text(self):
        return "\n".join(self.lines) + "\n"


def vr(base, n=1, p="v"):
    return f"{p}{base}" if n == 1 else f"{p}[{base}:{base + n - 1}]"


def ar(base, n=1):
    return vr(base, n, "a")


def sr(base, n=1):
    return vr(base, n, "s")


TRANS = ("v_exp_f32", "v_rcp_f32", "v_rsq_f32", "v_sqrt_f32", "v_log_f32")


def cost(ins):
    op = ins.split()[0]
    if op.startswith(TRANS):
        return 2
    return 1


def spread(stream, ngaps, first=0, last=None):
    last = ngaps - 1 if last is None else last
    out = [[] for _ in range(ngaps)]
    total = sum(cost(i) for i in stream)
    n = last - first + 1
    acc = 0
    for ins in stream:
        g = first + min(n - 1, int(acc * n / total)) if total else first
        out[g].append(ins)
        acc += cost(ins)
    return out


REG = re.compile(r"^(-|abs\()?([vas])(\d+)\)?$|^(-|abs\()?([vas])\[(\d+):(\d+)\]\)?$")


def regs_of(tok):
    tok = tok.strip().strip("|")
    if tok in ("vcc", "exec"):
        return {tok}
    if tok in ("vcc_lo", "vcc_hi"):
        return {"vcc"}
    if tok in ("exec_lo", "exec_hi"):
        return {"exec"}
    if tok == "m0":
        return {"m0"}
    m = REG.match(tok)
    if not m:
        return set()
    if m.group(2):
        return {m.group(2) + m.group(3)}
    return {m.group(5) + str(i) for i in range(int(m.group(6)), int(m.group(7)) + 1)}


class Ins:
    __slots__ = ("text", "op", "ops", "flags", "ann", "cls", "defs", "uses", "line", "extra")

    def __repr__(self):
        return f"{self.line}: {self.text}"


NODST_S = ("s_cmp", "s_cbranch", "s_branch", "s_waitcnt", "s_barrier", "s_nop", "s_setprio", "s_sleep", "s_endpgm", "s_bitcmp")


def parse_ins(line, lineno):
    body, _, cmt = line.partition(";")
    body = body.strip()
    ins = Ins()
    ins.text = body
    ins.line = lineno
    ins.ann = {}
    for m in re.finditer(r"@(\w+)(?:\s+([^@]*))?", cmt):
        ins.ann.setdefault(m.group(1), []).append((m.group(2) or "").strip())
    parts = body.split(None, 1)
    op = parts[0]
    for suf in ("_e32", "_e64"):
        if op.endswith(suf):
            op = op[: -len(suf)]
    ins.op = op
    rest = parts[1] if len(parts) > 1 else ""
    toks = [t.strip() for t in re.split(r",(?![^\[]*\])", rest)] if rest else []
    flags = []
    if toks:
        last = toks[-1].split()
        if len(last) > 1 and not op.startswith("s_waitcnt"):
            toks[-1] = last[0]
            flags = last[1:]
    ins.ops = toks
    ins.flags = flags
    R = [regs_of(t) for t in toks]
    d, u = set(), set()
    ins.extra = None
    if op.startswith("s_load") or op.startswith("s_memtime") or op.startswith("s_memrealtime"):
        ins.cls = "smem"
        d = R[0]
        u = set().union(*R[1:]) if len(R) > 1 else set()
    elif op.startswith("s_"):
        ins.cls = "salu"
        if op.startswith(NODST_S):
            u = set().union(*R) if R else set()
        else:
            d = set(R[0])
            u = set().union(*R[1:]) if len(R) > 1 else set()
            if "saveexec" in op:
                d |= {"exec"}
                u |= {"exec"}
    elif op.startswith("v_mfma"):
        ins.cls = "mfma"
        d = R[0]
        u = R[1] | R[2] | R[3]
        ins.extra = (R[0], R[1] | R[2], R[3], 8 if "32x32" in op else 4)
    elif op.startswith("v_"):
        ins.cls = "valu"
        d = set(R[0])
        u = set().union(*R[1:]) if len(R) > 1 else set()
        if op.startswith(("v_fmac", "v_dot2c", "v_writelane")) or "UNUSED_PRESERVE" in body:
            u |= R[0]
        if op.startswith("v_permlane") and "swap" in op:
            d = R[0] | R[1]
            u = R[0] | R[1]
        if op.startswith(("v_add_co", "v_sub_co", "v_addc_co", "v_subb_co")):
            d = R[0] | R[1]
            u = set().union(*R[2:])
        if op.startswith("v_cmpx"):
            d |= {"exec"}
    elif op.startswith("ds_"):
        ins.cls = "ds"
        if op.startswith(("ds_read", "ds_bpermute", "ds_permute", "ds_swizzle")):
            d = R[0]
            u = set().union(*R[1:])
        else:
            u = set().union(*R)
    elif op.startswith("buffer_"):
        ins.cls = "vmem"
        if op.startswith("buffer_load") and "lds" in flags:
            u = set().union(*R) | {"m0"}
            ins.extra = "dma"
        elif op.startswith("buffer_load"):
            d = R[0]
            u = set().union(*R[1:])
        elif op.startswith("buffer_atomic"):
            u = set().union(*R)
            if "sc0" in flags:
                d = R[0]
        elif op.startswith("buffer_store"):
            u = set().union(*R)
            ins.extra = ("store", R[0])
        else:
            pass
    else:
        raise ValueError(f"unknown instruction at line {lineno}: {body}")
    ins.defs, ins.uses = d, u
    return ins


def parse_kernel(text, label):
    lines = text.split("\n")
    start = next(i for i, l in enumerate(lines) if l.strip() == label + ":")
    prog, labels = [], {}
    for i in range(start + 1, len(lines)):
        l = lines[i].strip()
        if l.startswith((".section", ".globl")):
            break
        if not l or l.startswith(";") or l.startswith("."):
            if l.endswith(":") and not l.startswith(";"):
                labels[l[:-1]] = len(prog)
            continue
        if l.endswith(":"):
            labels[l[:-1]] = len(prog)
            continue
        prog.append(parse_ins(l, i + 1))
    return prog, labels


M32 = 0xFFFFFFFF


def trace(prog, labels, wg, vals, takes=None, maxlen=400000):
    s = {"s2": wg}
    scc = None
    pc = 0
    out = []
    takes = {k: list(v) for k, v in (takes or {}).items()}

    def val(tok):
        if tok in s:
            return s[tok]
        if re.match(r"^s\d+$|^m0$|^vcc|^exec", tok):
            return None
        try:
            return int(tok, 0) & M32
        except ValueError:
            return None

    while True:
        ins = prog[pc]
        snap = {a: [fmt_tag(t, s) for t in ins.ann[a]] for a in ins.ann if a in ("dma", "rd", "wr", "pdma", "prd")}
        out.append((ins, snap))
        if len(out) > maxlen:
            raise RuntimeError("trace too long (loop?)")
        op, o = ins.op, ins.ops
        nxt = pc + 1
        if op == "s_endpgm":
            return out
        if op == "s_branch":
            nxt = labels[o[0]]
        elif op.startswith("s_cbranch"):
            if "take" in ins.ann:
                nm = ins.ann["take"][0]
                lst = takes.get(nm, [0])
                t = lst.pop(0) if len(lst) > 1 else lst[0]
            elif op == "s_cbranch_scc1":
                assert scc is not None, f"unknown scc at {ins}"
                t = scc
            elif op == "s_cbranch_scc0":
                assert scc is not None, f"unknown scc at {ins}"
                t = not scc
            else:
                raise RuntimeError(f"branch needs @take: {ins}")
            if t:
                nxt = labels[o[0]]
        elif op.startswith("s_cmp"):
            a, b = val(o[0]), val(o[1])
            if a is None or b is None:
                scc = None
            else:
                k = op.split("_")[2]
                scc = {"eq": a == b, "lg": a != b, "lt": a < b, "le": a <= b, "gt": a > b, "ge": a >= b}[k]
        elif op.startswith("s_bitcmp1_b32"):
            a, b = val(o[0]), val(o[1])
            scc = None if a is None else bool(a >> b & 1)
        elif ins.cls == "salu" and ins.defs:
            a = val(o[1]) if len(o) > 1 else None
            b = val(o[2]) if len(o) > 2 else None
            r = None
            if op == "s_mov_b32":
                r = a
            elif op == "s_cselect_b32":
                r = None if scc is None else (a if scc else b)
            elif a is not None and b is not None:
                f = {
                    "s_add_u32": lambda: a + b, "s_sub_u32": lambda: a - b, "s_add_i32": lambda: a + b, "s_sub_i32": lambda: a - b,
                    "s_mul_i32": lambda: a * b, "s_lshl_b32": lambda: a << (b & 31), "s_lshr_b32": lambda: a >> (b & 31),
                    "s_and_b32": lambda: a & b, "s_or_b32": lambda: a | b, "s_xor_b32": lambda: a ^ b,
                    "s_min_u32": lambda: min(a, b), "s_max_u32": lambda: max(a, b), "s_mul_hi_u32": lambda: (a * b) >> 32,
                    "s_bfe_u32": lambda: (a >> (b & 31)) & ((1 << (b >> 16 & 127)) - 1),
                }.get(op)
                if f:
                    full = f()
                    r = full & M32
                    if op == "s_add_u32":
                        scc = full > M32
                    elif op == "s_sub_u32":
                        scc = full < 0
                    elif op in ("s_and_b32", "s_or_b32", "s_xor_b32", "s_lshl_b32", "s_lshr_b32", "s_bfe_u32"):
                        scc = r != 0
                    elif op in ("s_min_u32", "s_max_u32"):
                        scc = None
            else:
                if op not in ("s_mov_b64", "s_mul_i32", "s_mul_hi_u32"):
                    scc = None
            for d in ins.defs:
                s.pop(d, None)
            if r is not None and len(ins.defs) == 1:
                s[next(iter(ins.defs))] = r
        else:
            for d in ins.defs:
                s.pop(d, None)
            if "val" in ins.ann:
                s[o[0]] = vals[ins.ann["val"][0]]
        pc = nxt


def fmt_tag(t, s):
    return re.sub(r"\{(\w+)\}", lambda m: str(s.get(m.group(1), "?")), t)


def states(ins):
    if ins.op == "s_nop":
        return int(ins.ops[0], 0) + 1
    return 1


def is_sg(r):
    return r[0] == "s" or r == "vcc"


def hazard_need(p, c):
    need = 0
    pv = p.cls == "valu"
    if pv:
        w = p.defs
        if c.cls == "mfma" and w & c.uses:
            need = max(need, 2)
        if c.cls == "mfma" and "exec" in w:
            need = max(need, 4)
        sg = {r for r in w if is_sg(r)}
        if sg:
            if c.cls == "vmem" and sg & c.uses:
                need = max(need, 5)
            if c.cls == "valu" and (sg & c.uses or ("vcc" in sg and c.op.startswith(("v_cndmask", "v_addc", "v_subb")) and "vcc" in c.text)):
                need = max(need, 4 if c.op.startswith(("v_readlane", "v_writelane")) else 2)
            if c.cls == "salu" and sg & c.uses:
                need = max(need, 1)
            if c.op in ("s_cbranch_vccz", "s_cbranch_vccnz") and "vcc" in sg:
                need = max(need, 1)
        if c.op.startswith(("v_readfirstlane", "v_readlane")) and w & c.uses:
            need = max(need, 1)
        if c.op.startswith("v_permlane") and w & c.uses:
            need = max(need, 2)
        if c.cls == "valu" and ("dpp" in c.op or "row_" in c.text) and w & c.uses:
            need = max(need, 2)
        if p.op.startswith(TRANS) and c.cls == "valu" and w & c.uses:
            need = max(need, 1)
        if p.op.startswith("v_dot2") and c.cls in ("valu", "mfma", "ds", "vmem") and w & (c.uses | c.defs):
            same = c.op == p.op and not (w & (c.uses - regs_of(c.ops[-1]) - (c.defs if p.op.startswith("v_dot2c") else set())))
            need = max(need, 0 if same else 3)
        if "sdwa" in p.op and c.cls == "valu" and w & (c.uses | c.defs):
            need = max(need, 1)
        if p.op.startswith("v_cmpx") and c.op.startswith(("v_readlane", "v_readfirstlane", "v_permlane")):
            need = max(need, 4)
    if p.cls == "salu" and "m0" in p.defs and c.extra == "dma":
        need = max(need, 1)
    if p.cls == "vmem" and isinstance(p.extra, tuple) and len(p.extra[1]) >= 3:
        if c.defs & p.extra[1]:
            need = max(need, 2 if c.cls in ("valu", "mfma") else 1)
    if p.cls == "mfma":
        D, AB, C, passes = p.extra
        long_ = 12 if passes == 8 else 8
        if c.cls == "mfma":
            D2, AB2, C2, passes2 = c.extra
            if D & AB2:
                need = max(need, long_)
            if D & C2 and not (D == C2 and passes == passes2):
                need = max(need, 10 if passes == 8 else 6)
            if D & D2 and not (D & C2):
                need = max(need, 0)
        elif c.cls in ("valu", "ds", "vmem"):
            if D & (c.uses | c.defs):
                need = max(need, long_)
            if c.cls == "valu" and C & c.defs:
                need = max(need, 7 if passes == 8 else 3)
    return need


def check_trace(tr, name=""):
    errs = []
    window = []
    vmq, lgq = [], []
    epoch = 0
    events = []
    seen = set()

    def err(msg, ins):
        key = (msg.split(" reg ")[0], ins.line)
        if key not in seen:
            seen.add(key)
            errs.append(f"[{name}] {msg} @ {ins}")

    def retire(q, n, idx):
        while len(q) > n:
            e = q.pop(0)
            for ev in e["ev"]:
                ev[3] = epoch
                ev[5] = idx

    for idx, (ins, snap) in enumerate(tr):
        dist = 0
        for p in reversed(window):
            need = hazard_need(p, ins)
            if need > dist:
                err(f"hazard: needs {need} wait states after '{p.text}' (line {p.line}), has {dist}", ins)
            dist += states(p)
            if dist >= 20:
                break
        window.append(ins)
        if len(window) > 24:
            window.pop(0)
        if ins.op == "s_waitcnt":
            m = re.search(r"vmcnt\((\d+)\)", ins.text)
            if m:
                retire(vmq, int(m.group(1)), idx)
            m = re.search(r"lgkmcnt\((\d+)\)", ins.text)
            if m:
                n = int(m.group(1))
                if any(e["smem"] for e in lgq):
                    if n == 0:
                        retire(lgq, 0, idx)
                else:
                    retire(lgq, n, idx)
            continue
        if ins.op == "s_barrier":
            epoch += 1
            continue
        touched = ins.uses | ins.defs
        for q, nm in ((vmq, "vmcnt"), (lgq, "lgkmcnt")):
            for e in q:
                hit = e["dst"] & touched
                if hit and not ("dummy" in ins.ann and "dummy" in e["ins"].ann):
                    err(f"missing {nm} wait for '{e['ins'].text}' (line {e['ins'].line}) reg {sorted(hit)[:2]}", ins)
        evs = []
        for kind in ("dma", "rd", "wr", "pdma", "prd"):
            for t in snap.get(kind, []):
                if "?" in t:
                    err(f"unresolved tag {t}", ins)
                ev = [kind, t, epoch, None, idx, None, ins]
                evs.append(ev)
                events.append(ev)
        if ins.cls == "vmem":
            vmq.append({"dst": ins.defs, "ins": ins, "ev": evs})
            if len(vmq) > 63:
                err("more than 63 outstanding vmem ops", ins)
        elif ins.cls == "ds":
            lgq.append({"dst": ins.defs, "ins": ins, "ev": evs, "smem": False})
        elif ins.cls == "smem":
            lgq.append({"dst": ins.defs, "ins": ins, "ev": evs, "smem": True})
    for ev in events:
        if ev[3] is None:
            ev[3] = 10**9
            ev[5] = 10**9
    priv = {}
    for ev in events:
        if ev[0] in ("pdma", "prd"):
            priv.setdefault(ev[1], []).append(ev)
    for t, lst in priv.items():
        for a, b in zip(lst, lst[1:]):
            pass
        last_w, last_r = [], []
        for ev in lst:
            if ev[0] == "prd":
                for w in last_w:
                    if w[5] > ev[4]:
                        err(f"private slot {t}: read before write retired (line {w[6].line})", ev[6])
                last_r.append(ev)
            else:
                for r in last_r:
                    if r[5] > ev[4]:
                        err(f"private slot {t}: overwrite before read retired (line {r[6].line})", ev[6])
                last_r = []
                last_w = [w for w in last_w if w[5] > ev[4]] + [ev]
    return errs, [e for e in events if e[0] in ("dma", "rd", "wr")], epoch


def check_shared(all_events):
    errs = []
    by = {}
    for wv, evs in enumerate(all_events):
        for e in evs:
            by.setdefault(e[1], []).append((wv, e))
    seen = set()
    for t, lst in by.items():
        W = {(e[2], e[3], e[6].line) for _, e in lst if e[0] != "rd"}
        Rr = {(e[2], e[3], e[6].line) for _, e in lst if e[0] == "rd"}
        for wi, wr_, wl in W:
            for ri, rr, rl in Rr:
                if not (wr_ < ri or rr < wi):
                    key = (t.split(":")[0], wl, rl)
                    if key not in seen:
                        seen.add(key)
                        errs.append(f"shared slot {t}: write line {wl} (issue epoch {wi}, retired {wr_}) vs read line {rl} (issue {ri}, retired {rr})")
    return errs


def check_kernel(text, label, scenarios):
    prog, labels = parse_kernel(text, label)
    errs = []
    stats = []
    for sc in scenarios:
        wg, nwaves, takes = sc[0], sc[1], sc[2]
        extra = sc[3] if len(sc) > 3 else {}
        evs, epochs = [], []
        for w in range(nwaves):
            vals = {"wave": w}
            vals.update(extra)
            tr = trace(prog, labels, wg, vals, takes)
            e, ev, ep = check_trace(tr, f"{label} wg{wg} w{w}")
            errs += e
            evs.append(ev)
            epochs.append(ep)
            stats.append((wg, w, len(tr), ep))
        if len(set(epochs)) > 1:
            errs.append(f"[{label} wg{wg}] barrier counts differ between waves: {epochs}")
        errs += check_shared(evs)
    uniq = list({re.sub(r'^\[[^]]*\]', '', x): x for x in reversed(errs)}.values())[::-1]
    return uniq, stats
```

```python
import math
import struct
from asmlib import *

QN = 0
KN = QN + 64 * 36 * 1024
VT = KN + 64 * 36 * 1024
VT_KG = 37 * 512
ZT = VT + 128 * VT_KG
ZT_KG = 144 * 512
Z1 = ZT + 128 * ZT_KG
AN = Z1 + 64 * 144 * 1024
AN_T = 90 * 1024
SP = AN + 128 * AN_T
RSC = SP + 16 * 16 * 1024
WS_END = RSC + 2048 * 4

STAMPS = WS_END
import os
STAMP = int(os.environ.get('STAMP', '0'))
WS_SIZE = WS_END + (3 * 264 * 8 * 256 if STAMP else 0)

LOG2E = 1.4426950408889634
GA = 2.0 * math.sqrt(2.0 / math.pi) * LOG2E
GB = GA * 0.044715


def f32(x):
    return "0x%08x" % struct.unpack("<I", struct.pack("<f", x))[0]


class Q:
    def __init__(self, limit):
        self.q = []
        self.limit = limit

    def copy(self):
        c = Q(self.limit)
        c.q = list(self.q)
        return c

    def push(self, tag):
        self.q.append(tag)

    def need(self, tags):
        tags = set(tags)
        last = -1
        for i, t in enumerate(self.q):
            if t in tags:
                last = i
        if last < 0:
            return None
        n = len(self.q) - 1 - last
        n = min(n, self.limit)
        self.q = self.q[len(self.q) - n:] if n else []
        return n


class Emit:
    def __init__(self, a=None):
        self.a = a or Asm()
        self.vm = Q(63)
        self.lg = Q(15)

    def fork(self):
        e = Emit(self.a)
        e.vm = self.vm.copy()
        e.lg = self.lg.copy()
        return e

    def I(self, s):
        self.a.I(s)

    def L(self, s):
        self.a.L(s)

    def ds(self, s, tag):
        self.a.I(s)
        self.lg.push(tag)

    def vmem(self, s, tag):
        self.a.I(s)
        self.vm.push(tag)

    def wait(self, vm=(), lg=()):
        parts = []
        n = self.vm.need(vm) if vm else None
        if n is not None:
            parts.append(f"vmcnt({n})")
        n = self.lg.need(lg) if lg else None
        if n is not None:
            parts.append(f"lgkmcnt({n})")
        if parts:
            self.a.I("s_waitcnt " + " ".join(parts))
            return True
        return False

    def item(self, it):
        if isinstance(it, str):
            self.I(it)
        elif it[0] == "ds":
            self.ds(it[1], it[2])
        elif it[0] == "vm":
            self.vmem(it[1], it[2])
        elif it[0] == "wait":
            self.wait(it[1], it[2])
        elif it[0] == "raw":
            for ln in it[1]:
                if ln.endswith(":"):
                    self.L(ln[:-1])
                else:
                    self.I(ln)
        else:
            raise ValueError(it)


def srd(e, d, base, nbytes):
    e.I(f"s_mov_b32 s{d}, s{base}")
    e.I(f"s_and_b32 s{d + 1}, s{base + 1}, 0xffff")
    e.I(f"s_mov_b32 s{d + 2}, {nbytes}")
    e.I(f"s_mov_b32 s{d + 3}, 0x20000")


def kd(name, vgpr, acc, sgpr=102):
    return f""".p2align 6
.amdhsa_kernel {name}
  .amdhsa_next_free_vgpr {vgpr}
  .amdhsa_next_free_sgpr {sgpr}
  .amdhsa_accum_offset {acc}
  .amdhsa_group_segment_fixed_size 0
  .amdhsa_kernarg_size 88
  .amdhsa_user_sgpr_count 2
  .amdhsa_user_sgpr_kernarg_segment_ptr 1
  .amdhsa_system_sgpr_workgroup_id_x 1
.end_amdhsa_kernel
"""


def khead(a, name):
    a.raw(f".globl {name}")
    a.raw(".p2align 8")
    a.raw(f".type {name},@function")
    a.L(name)


class Stamper:
    def __init__(self, vreg, stmp):
        self.v, self.s, self.n = vreg, stmp, 0
        self.names = []

    def mark(self, e, name, real=False):
        if not STAMP:
            return
        e.I(f"{'s_memrealtime' if real else 's_memtime'} s[{self.s}:{self.s + 1}]")
        e.I("s_waitcnt lgkmcnt(0)")
        e.lg.q = []
        e.I(f"v_writelane_b32 v{self.v}, s{self.s}, {self.n}")
        self.names.append(name)
        self.n += 1

    def fork(self):
        c = Stamper(self.v, self.s)
        c.n = self.n
        c.names = list(self.names)
        return c

    def flush(self, e, kidx, s_ws, s_wave, vtmp, vlane):
        if not STAMP:
            return
        e.I(f"s_lshl_b32 s{self.s}, s2, 3")
        e.I(f"s_add_u32 s{self.s}, s{self.s}, s{s_wave}")
        e.I(f"s_lshl_b32 s{self.s}, s{self.s}, 8")
        e.I(f"s_add_u32 s{self.s}, s{self.s}, {STAMPS + kidx * 264 * 8 * 256}")
        e.I(f"v_lshlrev_b32 v{vtmp}, 2, v{vlane}")
        e.I(f"buffer_store_dword v{self.v}, v{vtmp}, s[{s_ws}:{s_ws + 3}], s{self.s} offen")
```

```python
import sys, importlib
from common import *
import asmlib

REF = "parallel_sum__mha_block__mixer_gmlp__prompt.s.ref"

def build(mods, check=True, verbose=True):
    ref = open(REF).read().split("\n")
    hdr = [l for l in ref if l.startswith(";") and "@launch" not in l and "Override launch" not in l and "grid=ceil" not in l]
    hdr = hdr[: next(i for i, l in enumerate(hdr) if "d_ws" in l) + 1]
    out = list(hdr)
    for m in mods:
        out.append(f"; @launch kernel={m.NAME} grid=({m.GRID},1,1) block=({m.BLOCK},1,1) lds={m.LDS}")
    out.append('.amdgcn_target "amdgcn-amd-amdhsa--gfx950"')
    out.append(".text")
    a = Asm()
    for m in dict.fromkeys(mods):
        m.gen(a)
    text = "\n".join(out) + "\n" + a.text() + 'Lcode_end:\n.section .rodata,"a"\n'
    done = set()
    for m in mods:
        if m.NAME not in done:
            text += kd(m.NAME, m.NVGPR, m.ACCOFF)
            done.add(m.NAME)
    ok = True
    if check:
        for m in mods:
            errs, stats = asmlib.check_kernel(text, m.NAME, m.scenarios(), getattr(m, 'EARLY_EXIT', False))
            if verbose:
                print(m.NAME, "trace lengths/barriers:", [(s[0], s[2], s[3]) for s in stats if s[1] in (0, 4)])
            for er in errs[:40]:
                print("ERR", er)
            ok &= not errs
    return text, ok

def strip(text):
    out = []
    for l in text.split("\n"):
        if not l.startswith(";") and "; @" in l:
            l = l[: l.index("; @")].rstrip()
        out.append(l)
    return "\n".join(out)

if __name__ == "__main__":
    names = sys.argv[2].split(",")
    mods = [importlib.import_module(n) for n in names]
    text, ok = build(mods)
    open(sys.argv[1], "w").write(strip(text))
    print("written", sys.argv[1], len(strip(text)), "bytes", "CHECK OK" if ok else "CHECK FAILED")
```

```python
import re


class Asm:
    def __init__(self):
        self.lines = []

    def I(self, s):
        for ln in s.split("\n"):
            ln = ln.strip()
            if ln:
                self.lines.append("    " + ln)

    def L(self, name):
        self.lines.append(name + ":")

    def raw(self, s):
        self.lines.append(s)

    def extend(self, items):
        for it in items:
            self.I(it)

    def text(self):
        return "\n".join(self.lines) + "\n"


def vr(base, n=1, p="v"):
    return f"{p}{base}" if n == 1 else f"{p}[{base}:{base + n - 1}]"


def ar(base, n=1):
    return vr(base, n, "a")


def sr(base, n=1):
    return vr(base, n, "s")


TRANS = ("v_exp_f32", "v_rcp_f32", "v_rsq_f32", "v_sqrt_f32", "v_log_f32")


def cost(ins):
    op = ins.split()[0]
    if op.startswith(TRANS):
        return 2
    return 1


def spread(stream, ngaps, first=0, last=None):
    last = ngaps - 1 if last is None else last
    out = [[] for _ in range(ngaps)]
    total = sum(cost(i) for i in stream)
    n = last - first + 1
    acc = 0
    for ins in stream:
        g = first + min(n - 1, int(acc * n / total)) if total else first
        out[g].append(ins)
        acc += cost(ins)
    return out


REG = re.compile(r"^(-|abs\()?([vas])(\d+)\)?$|^(-|abs\()?([vas])\[(\d+):(\d+)\]\)?$")


def regs_of(tok):
    tok = tok.strip().strip("|")
    if tok in ("vcc", "exec"):
        return {tok}
    if tok in ("vcc_lo", "vcc_hi"):
        return {"vcc"}
    if tok in ("exec_lo", "exec_hi"):
        return {"exec"}
    if tok == "m0":
        return {"m0"}
    m = REG.match(tok)
    if not m:
        return set()
    if m.group(2):
        return {m.group(2) + m.group(3)}
    return {m.group(5) + str(i) for i in range(int(m.group(6)), int(m.group(7)) + 1)}


class Ins:
    __slots__ = ("text", "op", "ops", "flags", "ann", "cls", "defs", "uses", "line", "extra")

    def __repr__(self):
        return f"{self.line}: {self.text}"


NODST_S = ("s_cmp", "s_cbranch", "s_branch", "s_waitcnt", "s_barrier", "s_nop", "s_setprio", "s_sleep", "s_endpgm", "s_bitcmp")


def parse_ins(line, lineno):
    body, _, cmt = line.partition(";")
    body = body.strip()
    ins = Ins()
    ins.text = body
    ins.line = lineno
    ins.ann = {}
    for m in re.finditer(r"@(\w+)(?:\s+([^@]*))?", cmt):
        ins.ann.setdefault(m.group(1), []).append((m.group(2) or "").strip())
    parts = body.split(None, 1)
    op = parts[0]
    for suf in ("_e32", "_e64"):
        if op.endswith(suf):
            op = op[: -len(suf)]
    ins.op = op
    rest = parts[1] if len(parts) > 1 else ""
    toks = [t.strip() for t in re.split(r",(?![^\[]*\])", rest)] if rest else []
    flags = []
    if toks:
        last = toks[-1].split()
        if len(last) > 1 and not op.startswith("s_waitcnt"):
            toks[-1] = last[0]
            flags = last[1:]
    ins.ops = toks
    ins.flags = flags
    R = [regs_of(t) for t in toks]
    d, u = set(), set()
    ins.extra = None
    if op.startswith("s_load") or op.startswith("s_memtime") or op.startswith("s_memrealtime"):
        ins.cls = "smem"
        d = R[0]
        u = set().union(*R[1:]) if len(R) > 1 else set()
    elif op.startswith("s_"):
        ins.cls = "salu"
        if op.startswith(NODST_S):
            u = set().union(*R) if R else set()
        else:
            d = set(R[0])
            u = set().union(*R[1:]) if len(R) > 1 else set()
            if "saveexec" in op:
                d |= {"exec"}
                u |= {"exec"}
    elif op.startswith("v_mfma"):
        ins.cls = "mfma"
        d = R[0]
        u = R[1] | R[2] | R[3]
        ins.extra = (R[0], R[1] | R[2], R[3], 8 if "32x32" in op else 4)
    elif op.startswith("v_"):
        ins.cls = "valu"
        d = set(R[0])
        u = set().union(*R[1:]) if len(R) > 1 else set()
        if op.startswith(("v_fmac", "v_dot2c", "v_writelane")) or "UNUSED_PRESERVE" in body:
            u |= R[0]
        if op.startswith("v_permlane") and "swap" in op:
            d = R[0] | R[1]
            u = R[0] | R[1]
        if op.startswith(("v_add_co", "v_sub_co", "v_addc_co", "v_subb_co")):
            d = R[0] | R[1]
            u = set().union(*R[2:])
        if op.startswith("v_cmpx"):
            d |= {"exec"}
    elif op.startswith("ds_"):
        ins.cls = "ds"
        if op.startswith(("ds_read", "ds_bpermute", "ds_permute", "ds_swizzle")):
            d = R[0]
            u = set().union(*R[1:])
        else:
            u = set().union(*R)
    elif op.startswith("global_load"):
        ins.cls = "vmem"
        d = R[0]
        u = set().union(*R[1:])
    elif op.startswith("buffer_"):
        ins.cls = "vmem"
        if op.startswith("buffer_load") and "lds" in flags:
            u = set().union(*R) | {"m0"}
            ins.extra = "dma"
        elif op.startswith("buffer_load"):
            d = R[0]
            u = set().union(*R[1:])
        elif op.startswith("buffer_atomic"):
            u = set().union(*R)
            if "sc0" in flags:
                d = R[0]
        elif op.startswith("buffer_store"):
            u = set().union(*R)
            ins.extra = ("store", R[0])
        else:
            pass
    else:
        raise ValueError(f"unknown instruction at line {lineno}: {body}")
    ins.defs, ins.uses = d, u
    return ins


def parse_kernel(text, label):
    lines = text.split("\n")
    start = next(i for i, l in enumerate(lines) if l.strip() == label + ":")
    prog, labels = [], {}
    for i in range(start + 1, len(lines)):
        l = lines[i].strip()
        if l.startswith((".section", ".globl")):
            break
        if not l or l.startswith(";") or l.startswith("."):
            if l.endswith(":") and not l.startswith(";"):
                labels[l[:-1]] = len(prog)
            continue
        if l.endswith(":"):
            labels[l[:-1]] = len(prog)
            continue
        prog.append(parse_ins(l, i + 1))
    return prog, labels


M32 = 0xFFFFFFFF


def trace(prog, labels, wg, vals, takes=None, maxlen=400000):
    s = {"s2": wg}
    scc = None
    pc = 0
    out = []
    takes = {k: list(v) for k, v in (takes or {}).items()}

    def val(tok):
        if tok in s:
            return s[tok]
        if re.match(r"^s\d+$|^m0$|^vcc|^exec", tok):
            return None
        try:
            return int(tok, 0) & M32
        except ValueError:
            return None

    while True:
        ins = prog[pc]
        snap = {a: [fmt_tag(t, s) for t in ins.ann[a]] for a in ins.ann if a in ("dma", "rd", "wr", "pdma", "prd")}
        out.append((ins, snap))
        if len(out) > maxlen:
            raise RuntimeError("trace too long (loop?)")
        op, o = ins.op, ins.ops
        nxt = pc + 1
        if op == "s_endpgm":
            return out
        if op == "s_branch":
            nxt = labels[o[0]]
        elif op.startswith("s_cbranch"):
            if "take" in ins.ann:
                nm = ins.ann["take"][0]
                lst = takes.get(nm, [0])
                t = lst.pop(0) if len(lst) > 1 else lst[0]
            elif op == "s_cbranch_scc1":
                assert scc is not None, f"unknown scc at {ins}"
                t = scc
            elif op == "s_cbranch_scc0":
                assert scc is not None, f"unknown scc at {ins}"
                t = not scc
            else:
                raise RuntimeError(f"branch needs @take: {ins}")
            if t:
                nxt = labels[o[0]]
        elif op.startswith("s_cmp"):
            a, b = val(o[0]), val(o[1])
            if a is None or b is None:
                scc = None
            else:
                k = op.split("_")[2]
                scc = {"eq": a == b, "lg": a != b, "lt": a < b, "le": a <= b, "gt": a > b, "ge": a >= b}[k]
        elif op.startswith("s_bitcmp1_b32"):
            a, b = val(o[0]), val(o[1])
            scc = None if a is None else bool(a >> b & 1)
        elif ins.cls == "salu" and ins.defs:
            a = val(o[1]) if len(o) > 1 else None
            b = val(o[2]) if len(o) > 2 else None
            r = None
            if op == "s_mov_b32":
                r = a
            elif op == "s_cselect_b32":
                r = None if scc is None else (a if scc else b)
            elif a is not None and b is not None:
                f = {
                    "s_add_u32": lambda: a + b, "s_sub_u32": lambda: a - b, "s_add_i32": lambda: a + b, "s_sub_i32": lambda: a - b,
                    "s_mul_i32": lambda: a * b, "s_lshl_b32": lambda: a << (b & 31), "s_lshr_b32": lambda: a >> (b & 31),
                    "s_and_b32": lambda: a & b, "s_or_b32": lambda: a | b, "s_xor_b32": lambda: a ^ b,
                    "s_min_u32": lambda: min(a, b), "s_max_u32": lambda: max(a, b), "s_mul_hi_u32": lambda: (a * b) >> 32,
                    "s_bfe_u32": lambda: (a >> (b & 31)) & ((1 << (b >> 16 & 127)) - 1),
                }.get(op)
                if f:
                    full = f()
                    r = full & M32
                    if op == "s_add_u32":
                        scc = full > M32
                    elif op == "s_sub_u32":
                        scc = full < 0
                    elif op in ("s_and_b32", "s_or_b32", "s_xor_b32", "s_lshl_b32", "s_lshr_b32", "s_bfe_u32"):
                        scc = r != 0
                    elif op in ("s_min_u32", "s_max_u32"):
                        scc = None
            else:
                if op not in ("s_mov_b64", "s_mul_i32", "s_mul_hi_u32"):
                    scc = None
            for d in ins.defs:
                s.pop(d, None)
            if r is not None and len(ins.defs) == 1:
                s[next(iter(ins.defs))] = r
        else:
            for d in ins.defs:
                s.pop(d, None)
            if "val" in ins.ann:
                s[o[0]] = vals[ins.ann["val"][0]]
        pc = nxt


def fmt_tag(t, s):
    return re.sub(r"\{(\w+)\}", lambda m: str(s.get(m.group(1), "?")), t)


def states(ins):
    if ins.op == "s_nop":
        return int(ins.ops[0], 0) + 1
    return 1


def is_sg(r):
    return r[0] == "s" or r == "vcc"


def hazard_need(p, c):
    need = 0
    pv = p.cls == "valu"
    if pv:
        w = p.defs
        if c.cls == "mfma" and w & c.uses:
            need = max(need, 2)
        if c.cls == "mfma" and "exec" in w:
            need = max(need, 4)
        sg = {r for r in w if is_sg(r)}
        if sg:
            if c.cls == "vmem" and sg & c.uses:
                need = max(need, 5)
            if c.cls == "valu" and (sg & c.uses or ("vcc" in sg and c.op.startswith(("v_cndmask", "v_addc", "v_subb")) and "vcc" in c.text)):
                need = max(need, 4 if c.op.startswith(("v_readlane", "v_writelane")) else 2)
            if c.cls == "salu" and sg & c.uses:
                need = max(need, 1)
            if c.op in ("s_cbranch_vccz", "s_cbranch_vccnz") and "vcc" in sg:
                need = max(need, 1)
        if c.op.startswith(("v_readfirstlane", "v_readlane")) and w & c.uses:
            need = max(need, 1)
        if c.op.startswith("v_permlane") and w & c.uses:
            need = max(need, 2)
        if c.cls == "valu" and ("dpp" in c.op or "row_" in c.text) and w & c.uses:
            need = max(need, 2)
        if p.op.startswith(TRANS) and c.cls == "valu" and w & c.uses:
            need = max(need, 1)
        if p.op.startswith("v_dot2") and c.cls in ("valu", "mfma", "ds", "vmem") and w & (c.uses | c.defs):
            same = c.op == p.op and not (w & (c.uses - regs_of(c.ops[-1]) - (c.defs if p.op.startswith("v_dot2c") else set())))
            need = max(need, 0 if same else 3)
        if "sdwa" in p.op and c.cls == "valu" and w & (c.uses | c.defs):
            need = max(need, 1)
        if p.op.startswith("v_cmpx") and c.op.startswith(("v_readlane", "v_readfirstlane", "v_permlane")):
            need = max(need, 4)
    if p.cls == "salu" and "m0" in p.defs and c.extra == "dma":
        need = max(need, 1)
    if p.cls == "vmem" and isinstance(p.extra, tuple) and len(p.extra[1]) >= 3:
        if c.defs & p.extra[1]:
            need = max(need, 2 if c.cls in ("valu", "mfma") else 1)
    if p.cls == "mfma":
        D, AB, C, passes = p.extra
        long_ = 12 if passes == 8 else 8
        if c.cls == "mfma":
            D2, AB2, C2, passes2 = c.extra
            if D & AB2:
                need = max(need, long_)
            if D & C2 and not (D == C2 and passes == passes2):
                need = max(need, 10 if passes == 8 else 6)
            if D & D2 and not (D & C2):
                need = max(need, 0)
        elif c.cls in ("valu", "ds", "vmem"):
            if D & (c.uses | c.defs):
                need = max(need, long_)
            if c.cls == "valu" and C & c.defs:
                need = max(need, 7 if passes == 8 else 3)
    return need


def check_trace(tr, name=""):
    errs = []
    window = []
    vmq, lgq = [], []
    epoch = 0
    events = []
    seen = set()

    def err(msg, ins):
        key = (msg.split(" reg ")[0], ins.line)
        if key not in seen:
            seen.add(key)
            errs.append(f"[{name}] {msg} @ {ins}")

    def retire(q, n, idx):
        while len(q) > n:
            e = q.pop(0)
            for ev in e["ev"]:
                ev[3] = epoch
                ev[5] = idx

    for idx, (ins, snap) in enumerate(tr):
        dist = 0
        for p in reversed(window):
            need = hazard_need(p, ins)
            if need > dist:
                err(f"hazard: needs {need} wait states after '{p.text}' (line {p.line}), has {dist}", ins)
            dist += states(p)
            if dist >= 20:
                break
        window.append(ins)
        if len(window) > 24:
            window.pop(0)
        if ins.op == "s_waitcnt":
            m = re.search(r"vmcnt\((\d+)\)", ins.text)
            if m:
                retire(vmq, int(m.group(1)), idx)
            m = re.search(r"lgkmcnt\((\d+)\)", ins.text)
            if m:
                n = int(m.group(1))
                if any(e["smem"] for e in lgq):
                    if n == 0:
                        retire(lgq, 0, idx)
                else:
                    retire(lgq, n, idx)
            continue
        if ins.op == "s_barrier":
            epoch += 1
            continue
        touched = ins.uses | ins.defs
        for q, nm in ((vmq, "vmcnt"), (lgq, "lgkmcnt")):
            for e in q:
                hit = e["dst"] & touched
                if hit and not ("dummy" in ins.ann and "dummy" in e["ins"].ann):
                    err(f"missing {nm} wait for '{e['ins'].text}' (line {e['ins'].line}) reg {sorted(hit)[:2]}", ins)
        evs = []
        for kind in ("dma", "rd", "wr", "pdma", "prd"):
            for t in snap.get(kind, []):
                if "?" in t:
                    err(f"unresolved tag {t}", ins)
                ev = [kind, t, epoch, None, idx, None, ins]
                evs.append(ev)
                events.append(ev)
        if ins.cls == "vmem":
            vmq.append({"dst": ins.defs, "ins": ins, "ev": evs})
            if len(vmq) > 63:
                err("more than 63 outstanding vmem ops", ins)
        elif ins.cls == "ds":
            lgq.append({"dst": ins.defs, "ins": ins, "ev": evs, "smem": False})
        elif ins.cls == "smem":
            lgq.append({"dst": ins.defs, "ins": ins, "ev": evs, "smem": True})
    for ev in events:
        if ev[3] is None:
            ev[3] = 10**9
            ev[5] = 10**9
    priv = {}
    for ev in events:
        if ev[0] in ("pdma", "prd"):
            priv.setdefault(ev[1], []).append(ev)
    for t, lst in priv.items():
        for a, b in zip(lst, lst[1:]):
            pass
        last_w, last_r = [], []
        for ev in lst:
            if ev[0] == "prd":
                for w in last_w:
                    if w[5] > ev[4]:
                        err(f"private slot {t}: read before write retired (line {w[6].line})", ev[6])
                last_r.append(ev)
            else:
                for r in last_r:
                    if r[5] > ev[4]:
                        err(f"private slot {t}: overwrite before read retired (line {r[6].line})", ev[6])
                last_r = []
                last_w = [w for w in last_w if w[5] > ev[4]] + [ev]
    return errs, [e for e in events if e[0] in ("dma", "rd", "wr")], epoch


def check_shared(all_events):
    errs = []
    by = {}
    for wv, evs in enumerate(all_events):
        for e in evs:
            by.setdefault(e[1], []).append((wv, e))
    seen = set()
    for t, lst in by.items():
        W = {(e[2], e[3], e[6].line) for _, e in lst if e[0] != "rd"}
        Rr = {(e[2], e[3], e[6].line) for _, e in lst if e[0] == "rd"}
        for wi, wr_, wl in W:
            for ri, rr, rl in Rr:
                if not (wr_ < ri or rr < wi):
                    key = (t.split(":")[0], wl, rl)
                    if key not in seen:
                        seen.add(key)
                        errs.append(f"shared slot {t}: write line {wl} (issue epoch {wi}, retired {wr_}) vs read line {rl} (issue {ri}, retired {rr})")
    return errs


def check_kernel(text, label, scenarios):
    prog, labels = parse_kernel(text, label)
    errs = []
    stats = []
    for sc in scenarios:
        wg, nwaves, takes = sc[0], sc[1], sc[2]
        extra = sc[3] if len(sc) > 3 else {}
        evs, epochs = [], []
        for w in range(nwaves):
            vals = {"wave": w}
            vals.update(extra)
            tr = trace(prog, labels, wg, vals, takes)
            e, ev, ep = check_trace(tr, f"{label} wg{wg} w{w}")
            errs += e
            evs.append(ev)
            epochs.append(ep)
            stats.append((wg, w, len(tr), ep))
        if len(set(epochs)) > 1:
            errs.append(f"[{label} wg{wg}] barrier counts differ between waves: {epochs}")
        errs += check_shared(evs)
    uniq = list({re.sub(r'^\[[^]]*\]', '', x): x for x in reversed(errs)}.values())[::-1]
    return uniq, stats
```

```python
import math
import struct
from asmlib import *

QN = 0
KN = QN + 64 * 36 * 1024
VT = KN + 64 * 36 * 1024
VT_KG = 37 * 512
ZT = VT + 128 * VT_KG
ZT_KG = 144 * 512
Z1 = ZT + 128 * ZT_KG
AN = Z1 + 64 * 144 * 1024
AN_T = 90 * 1024
SP = AN + 128 * AN_T
RSC = SP + 16 * 16 * 1024
WS_END = RSC + 2048 * 4

STAMPS = WS_END
import os
STAMP = int(os.environ.get('STAMP', '0'))
WS_SIZE = WS_END + (3 * 264 * 8 * 256 if STAMP else 0)

LOG2E = 1.4426950408889634
GA = 2.0 * math.sqrt(2.0 / math.pi) * LOG2E
GB = GA * 0.044715


def f32(x):
    return "0x%08x" % struct.unpack("<I", struct.pack("<f", x))[0]


class Q:
    def __init__(self, limit):
        self.q = []
        self.limit = limit

    def copy(self):
        c = Q(self.limit)
        c.q = list(self.q)
        return c

    def push(self, tag):
        self.q.append(tag)

    def need(self, tags):
        tags = set(tags)
        last = -1
        for i, t in enumerate(self.q):
            if t in tags:
                last = i
        if last < 0:
            return None
        n = len(self.q) - 1 - last
        n = min(n, self.limit)
        self.q = self.q[len(self.q) - n:] if n else []
        return n


class Emit:
    def __init__(self, a=None):
        self.a = a or Asm()
        self.vm = Q(63)
        self.lg = Q(15)

    def fork(self):
        e = Emit(self.a)
        e.vm = self.vm.copy()
        e.lg = self.lg.copy()
        return e

    def I(self, s):
        self.a.I(s)

    def L(self, s):
        self.a.L(s)

    def ds(self, s, tag):
        self.a.I(s)
        self.lg.push(tag)

    def vmem(self, s, tag):
        self.a.I(s)
        self.vm.push(tag)

    def wait(self, vm=(), lg=()):
        parts = []
        n = self.vm.need(vm) if vm else None
        if n is not None:
            parts.append(f"vmcnt({n})")
        n = self.lg.need(lg) if lg else None
        if n is not None:
            parts.append(f"lgkmcnt({n})")
        if parts:
            self.a.I("s_waitcnt " + " ".join(parts))
            return True
        return False

    def item(self, it):
        if isinstance(it, str):
            self.I(it)
        elif it[0] == "ds":
            self.ds(it[1], it[2])
        elif it[0] == "vm":
            self.vmem(it[1], it[2])
        elif it[0] == "wait":
            self.wait(it[1], it[2])
        elif it[0] == "raw":
            for ln in it[1]:
                if ln.endswith(":"):
                    self.L(ln[:-1])
                else:
                    self.I(ln)
        else:
            raise ValueError(it)


def srd(e, d, base, nbytes):
    e.I(f"s_mov_b32 s{d}, s{base}")
    e.I(f"s_and_b32 s{d + 1}, s{base + 1}, 0xffff")
    e.I(f"s_mov_b32 s{d + 2}, {nbytes}")
    e.I(f"s_mov_b32 s{d + 3}, 0x20000")


def kd(name, vgpr, acc, sgpr=102):
    return f""".p2align 6
.amdhsa_kernel {name}
  .amdhsa_next_free_vgpr {vgpr}
  .amdhsa_next_free_sgpr {sgpr}
  .amdhsa_accum_offset {acc}
  .amdhsa_group_segment_fixed_size 0
  .amdhsa_kernarg_size 88
  .amdhsa_user_sgpr_count 2
  .amdhsa_user_sgpr_kernarg_segment_ptr 1
  .amdhsa_system_sgpr_workgroup_id_x 1
.end_amdhsa_kernel
"""


def khead(a, name):
    a.raw(f".globl {name}")
    a.raw(".p2align 8")
    a.raw(f".type {name},@function")
    a.L(name)


class Stamper:
    def __init__(self, vreg, stmp):
        self.v, self.s, self.n = vreg, stmp, 0
        self.names = []

    def mark(self, e, name, real=False):
        if not STAMP:
            return
        e.I(f"{'s_memrealtime' if real else 's_memtime'} s[{self.s}:{self.s + 1}]")
        e.I("s_waitcnt lgkmcnt(0)")
        e.lg.q = []
        e.I(f"v_writelane_b32 v{self.v}, s{self.s}, {self.n}")
        self.names.append(name)
        self.n += 1

    def fork(self):
        c = Stamper(self.v, self.s)
        c.n = self.n
        c.names = list(self.names)
        return c

    def flush(self, e, kidx, s_ws, s_wave, vtmp, vlane):
        if not STAMP:
            return
        e.I(f"s_lshl_b32 s{self.s}, s2, 3")
        e.I(f"s_add_u32 s{self.s}, s{self.s}, s{s_wave}")
        e.I(f"s_lshl_b32 s{self.s}, s{self.s}, 8")
        e.I(f"s_add_u32 s{self.s}, s{self.s}, {STAMPS + kidx * 264 * 8 * 256}")
        e.I(f"v_lshlrev_b32 v{vtmp}, 2, v{vlane}")
        e.I(f"buffer_store_dword v{self.v}, v{vtmp}, s[{s_ws}:{s_ws + 3}], s{self.s} offen")


CODEPF = int(os.environ.get("CODEPF", "1"))


def code_prefetch(e, tag, first, last, per_wg, vtmp, vdum, stmp):
    if not CODEPF:
        return
    I = e.I
    I(f"s_getpc_b64 s[{stmp}:{stmp + 1}]")
    e.L(f"Lpc_{tag}")
    I(f"s_lshr_b32 s{stmp + 2}, s2, 3")
    I(f"s_mul_i32 s{stmp + 2}, s{stmp + 2}, {per_wg}")
    I(f"v_add_lshl_u32 v{vtmp}, v0, s{stmp + 2}, 7")
    I(f"s_sub_u32 s{stmp}, s{stmp}, Lpc_{tag}-{first}")
    I(f"s_subb_u32 s{stmp + 1}, s{stmp + 1}, 0")
    I(f"v_min_u32 v{vtmp}, {last}-{first}-4, v{vtmp}")
    I(f"v_cmp_gt_u32 s[{stmp + 2}:{stmp + 3}], {per_wg}, v0")
    I(f"v_mov_b32 v{vtmp + 1}, s{stmp + 1}")
    I(f"v_add_co_u32 v{vtmp}, vcc, s{stmp}, v{vtmp}")
    I("s_nop 1")
    I(f"v_addc_co_u32 v{vtmp + 1}, vcc, 0, v{vtmp + 1}, vcc")
    I(f"s_and_saveexec_b64 s[{stmp}:{stmp + 1}], s[{stmp + 2}:{stmp + 3}]")
    I(f"s_cbranch_execz Lpcs_{tag}")
    I(f"global_load_dword v{vdum}, v[{vtmp}:{vtmp + 1}], off ; @dummy")
    e.L(f"Lpcs_{tag}")
    I(f"s_mov_b64 exec, s[{stmp}:{stmp + 1}]")
```

```python
import re


class Asm:
    def __init__(self):
        self.lines = []

    def I(self, s):
        for ln in s.split("\n"):
            ln = ln.strip()
            if ln:
                self.lines.append("    " + ln)

    def L(self, name):
        self.lines.append(name + ":")

    def raw(self, s):
        self.lines.append(s)

    def extend(self, items):
        for it in items:
            self.I(it)

    def text(self):
        return "\n".join(self.lines) + "\n"


def vr(base, n=1, p="v"):
    return f"{p}{base}" if n == 1 else f"{p}[{base}:{base + n - 1}]"


def ar(base, n=1):
    return vr(base, n, "a")


def sr(base, n=1):
    return vr(base, n, "s")


TRANS = ("v_exp_f32", "v_rcp_f32", "v_rsq_f32", "v_sqrt_f32", "v_log_f32")


def cost(ins):
    op = ins.split()[0]
    if op.startswith(TRANS):
        return 2
    return 1


def spread(stream, ngaps, first=0, last=None):
    last = ngaps - 1 if last is None else last
    out = [[] for _ in range(ngaps)]
    total = sum(cost(i) for i in stream)
    n = last - first + 1
    acc = 0
    for ins in stream:
        g = first + min(n - 1, int(acc * n / total)) if total else first
        out[g].append(ins)
        acc += cost(ins)
    return out


REG = re.compile(r"^(-|abs\()?([vas])(\d+)\)?$|^(-|abs\()?([vas])\[(\d+):(\d+)\]\)?$")


def regs_of(tok):
    tok = tok.strip().strip("|")
    if tok in ("vcc", "exec"):
        return {tok}
    if tok in ("vcc_lo", "vcc_hi"):
        return {"vcc"}
    if tok in ("exec_lo", "exec_hi"):
        return {"exec"}
    if tok == "m0":
        return {"m0"}
    m = REG.match(tok)
    if not m:
        return set()
    if m.group(2):
        return {m.group(2) + m.group(3)}
    return {m.group(5) + str(i) for i in range(int(m.group(6)), int(m.group(7)) + 1)}


class Ins:
    __slots__ = ("text", "op", "ops", "flags", "ann", "cls", "defs", "uses", "line", "extra")

    def __repr__(self):
        return f"{self.line}: {self.text}"


NODST_S = ("s_cmp", "s_cbranch", "s_branch", "s_waitcnt", "s_barrier", "s_nop", "s_setprio", "s_sleep", "s_endpgm", "s_bitcmp")


def parse_ins(line, lineno):
    body, _, cmt = line.partition(";")
    body = body.strip()
    ins = Ins()
    ins.text = body
    ins.line = lineno
    ins.ann = {}
    for m in re.finditer(r"@(\w+)(?:\s+([^@]*))?", cmt):
        ins.ann.setdefault(m.group(1), []).append((m.group(2) or "").strip())
    parts = body.split(None, 1)
    op = parts[0]
    for suf in ("_e32", "_e64"):
        if op.endswith(suf):
            op = op[: -len(suf)]
    ins.op = op
    rest = parts[1] if len(parts) > 1 else ""
    toks = [t.strip() for t in re.split(r",(?![^\[]*\])", rest)] if rest else []
    flags = []
    if toks:
        last = toks[-1].split()
        if len(last) > 1 and not op.startswith("s_waitcnt"):
            toks[-1] = last[0]
            flags = last[1:]
    ins.ops = toks
    ins.flags = flags
    R = [regs_of(t) for t in toks]
    d, u = set(), set()
    ins.extra = None
    if op.startswith("s_load") or op.startswith("s_memtime") or op.startswith("s_memrealtime"):
        ins.cls = "smem"
        d = R[0]
        u = set().union(*R[1:]) if len(R) > 1 else set()
    elif op.startswith("s_"):
        ins.cls = "salu"
        if op.startswith(NODST_S):
            u = set().union(*R) if R else set()
        else:
            d = set(R[0])
            u = set().union(*R[1:]) if len(R) > 1 else set()
            if "saveexec" in op:
                d |= {"exec"}
                u |= {"exec"}
    elif op.startswith("v_mfma"):
        ins.cls = "mfma"
        d = R[0]
        u = R[1] | R[2] | R[3]
        ins.extra = (R[0], R[1] | R[2], R[3], 8 if "32x32" in op else 4)
    elif op.startswith("v_"):
        ins.cls = "valu"
        d = set(R[0])
        u = set().union(*R[1:]) if len(R) > 1 else set()
        if op.startswith(("v_fmac", "v_dot2c", "v_writelane")) or "UNUSED_PRESERVE" in body:
            u |= R[0]
        if op.startswith("v_permlane") and "swap" in op:
            d = R[0] | R[1]
            u = R[0] | R[1]
        if op.startswith(("v_add_co", "v_sub_co", "v_addc_co", "v_subb_co")):
            d = R[0] | R[1]
            u = set().union(*R[2:])
        if op.startswith("v_cmpx"):
            d |= {"exec"}
    elif op.startswith("ds_"):
        ins.cls = "ds"
        if op.startswith(("ds_read", "ds_bpermute", "ds_permute", "ds_swizzle")) or "_rtn" in op:
            d = R[0]
            u = set().union(*R[1:])
        else:
            u = set().union(*R)
    elif op.startswith("global_load"):
        ins.cls = "vmem"
        d = R[0]
        u = set().union(*R[1:])
    elif op.startswith("buffer_"):
        ins.cls = "vmem"
        if op.startswith("buffer_load") and "lds" in flags:
            u = set().union(*R) | {"m0"}
            ins.extra = "dma"
        elif op.startswith("buffer_load"):
            d = R[0]
            u = set().union(*R[1:])
        elif op.startswith("buffer_atomic"):
            u = set().union(*R)
            if "sc0" in flags:
                d = R[0]
        elif op.startswith("buffer_store"):
            u = set().union(*R)
            ins.extra = ("store", R[0])
        else:
            pass
    else:
        raise ValueError(f"unknown instruction at line {lineno}: {body}")
    ins.defs, ins.uses = d, u
    return ins


def parse_kernel(text, label):
    lines = text.split("\n")
    start = next(i for i, l in enumerate(lines) if l.strip() == label + ":")
    prog, labels = [], {}
    for i in range(start + 1, len(lines)):
        l = lines[i].strip()
        if l.startswith((".section", ".globl")):
            break
        if not l or l.startswith(";") or l.startswith("."):
            if l.endswith(":") and not l.startswith(";"):
                labels[l[:-1]] = len(prog)
            continue
        if l.endswith(":"):
            labels[l[:-1]] = len(prog)
            continue
        prog.append(parse_ins(l, i + 1))
    return prog, labels


M32 = 0xFFFFFFFF


def trace(prog, labels, wg, vals, takes=None, maxlen=400000):
    s = {"s2": wg}
    scc = None
    pc = 0
    out = []
    takes = {k: list(v) for k, v in (takes or {}).items()}

    def val(tok):
        if tok in s:
            return s[tok]
        if re.match(r"^s\d+$|^m0$|^vcc|^exec", tok):
            return None
        try:
            return int(tok, 0) & M32
        except ValueError:
            return None

    while True:
        ins = prog[pc]
        snap = {a: [fmt_tag(t, s) for t in ins.ann[a]] for a in ins.ann if a in ("dma", "rd", "wr", "pdma", "prd")}
        out.append((ins, snap))
        if len(out) > maxlen:
            raise RuntimeError("trace too long (loop?)")
        op, o = ins.op, ins.ops
        nxt = pc + 1
        if op == "s_endpgm":
            return out
        if op == "s_branch":
            nxt = labels[o[0]]
        elif op.startswith("s_cbranch"):
            if "take" in ins.ann:
                nm = ins.ann["take"][0]
                lst = takes.get(nm, [0])
                t = lst.pop(0) if len(lst) > 1 else lst[0]
            elif op == "s_cbranch_scc1":
                assert scc is not None, f"unknown scc at {ins}"
                t = scc
            elif op == "s_cbranch_scc0":
                assert scc is not None, f"unknown scc at {ins}"
                t = not scc
            else:
                raise RuntimeError(f"branch needs @take: {ins}")
            if t:
                nxt = labels[o[0]]
        elif op.startswith("s_cmp"):
            a, b = val(o[0]), val(o[1])
            if a is None or b is None:
                scc = None
            else:
                k = op.split("_")[2]
                scc = {"eq": a == b, "lg": a != b, "lt": a < b, "le": a <= b, "gt": a > b, "ge": a >= b}[k]
        elif op.startswith("s_bitcmp1_b32"):
            a, b = val(o[0]), val(o[1])
            scc = None if a is None else bool(a >> b & 1)
        elif ins.cls == "salu" and ins.defs:
            a = val(o[1]) if len(o) > 1 else None
            b = val(o[2]) if len(o) > 2 else None
            r = None
            if op == "s_mov_b32":
                r = a
            elif op == "s_cselect_b32":
                r = None if scc is None else (a if scc else b)
            elif a is not None and b is not None:
                f = {
                    "s_add_u32": lambda: a + b, "s_sub_u32": lambda: a - b, "s_add_i32": lambda: a + b, "s_sub_i32": lambda: a - b,
                    "s_mul_i32": lambda: a * b, "s_lshl_b32": lambda: a << (b & 31), "s_lshr_b32": lambda: a >> (b & 31),
                    "s_and_b32": lambda: a & b, "s_or_b32": lambda: a | b, "s_xor_b32": lambda: a ^ b,
                    "s_min_u32": lambda: min(a, b), "s_max_u32": lambda: max(a, b), "s_mul_hi_u32": lambda: (a * b) >> 32,
                    "s_bfe_u32": lambda: (a >> (b & 31)) & ((1 << (b >> 16 & 127)) - 1),
                }.get(op)
                if f:
                    full = f()
                    r = full & M32
                    if op == "s_add_u32":
                        scc = full > M32
                    elif op == "s_sub_u32":
                        scc = full < 0
                    elif op in ("s_and_b32", "s_or_b32", "s_xor_b32", "s_lshl_b32", "s_lshr_b32", "s_bfe_u32"):
                        scc = r != 0
                    elif op in ("s_min_u32", "s_max_u32"):
                        scc = None
            else:
                if op not in ("s_mov_b64", "s_mul_i32", "s_mul_hi_u32"):
                    scc = None
            for d in ins.defs:
                s.pop(d, None)
            if r is not None and len(ins.defs) == 1:
                s[next(iter(ins.defs))] = r
        else:
            for d in ins.defs:
                s.pop(d, None)
            if "val" in ins.ann:
                s[o[0]] = vals[ins.ann["val"][0]]
        pc = nxt


def fmt_tag(t, s):
    return re.sub(r"\{(\w+)\}", lambda m: str(s.get(m.group(1), "?")), t)


def states(ins):
    if ins.op == "s_nop":
        return int(ins.ops[0], 0) + 1
    return 1


def is_sg(r):
    return r[0] == "s" or r == "vcc"


def hazard_need(p, c):
    need = 0
    pv = p.cls == "valu"
    if pv:
        w = p.defs
        if c.cls == "mfma" and w & c.uses:
            need = max(need, 2)
        if c.cls == "mfma" and "exec" in w:
            need = max(need, 4)
        sg = {r for r in w if is_sg(r)}
        if sg:
            if c.cls == "vmem" and sg & c.uses:
                need = max(need, 5)
            if c.cls == "valu" and (sg & c.uses or ("vcc" in sg and c.op.startswith(("v_cndmask", "v_addc", "v_subb")) and "vcc" in c.text)):
                need = max(need, 4 if c.op.startswith(("v_readlane", "v_writelane")) else 2)
            if c.cls == "salu" and sg & c.uses:
                need = max(need, 1)
            if c.op in ("s_cbranch_vccz", "s_cbranch_vccnz") and "vcc" in sg:
                need = max(need, 1)
        if c.op.startswith(("v_readfirstlane", "v_readlane")) and w & c.uses:
            need = max(need, 1)
        if c.op.startswith("v_permlane") and w & c.uses:
            need = max(need, 2)
        if c.cls == "valu" and ("dpp" in c.op or "row_" in c.text) and w & c.uses:
            need = max(need, 2)
        if p.op.startswith(TRANS) and c.cls == "valu" and w & c.uses:
            need = max(need, 1)
        if p.op.startswith("v_dot2") and c.cls in ("valu", "mfma", "ds", "vmem") and w & (c.uses | c.defs):
            same = c.op == p.op and not (w & (c.uses - regs_of(c.ops[-1]) - (c.defs if p.op.startswith("v_dot2c") else set())))
            need = max(need, 0 if same else 3)
        if "sdwa" in p.op and c.cls == "valu" and w & (c.uses | c.defs):
            need = max(need, 1)
        if p.op.startswith("v_cmpx") and c.op.startswith(("v_readlane", "v_readfirstlane", "v_permlane")):
            need = max(need, 4)
    if p.cls == "salu" and "m0" in p.defs and c.extra == "dma":
        need = max(need, 1)
    if p.cls == "vmem" and isinstance(p.extra, tuple) and len(p.extra[1]) >= 3:
        if c.defs & p.extra[1]:
            need = max(need, 2 if c.cls in ("valu", "mfma") else 1)
    if p.cls == "mfma":
        D, AB, C, passes = p.extra
        long_ = 12 if passes == 8 else 8
        if c.cls == "mfma":
            D2, AB2, C2, passes2 = c.extra
            if D & AB2:
                need = max(need, long_)
            if D & C2 and not (D == C2 and passes == passes2):
                need = max(need, 10 if passes == 8 else 6)
            if D & D2 and not (D & C2):
                need = max(need, 0)
        elif c.cls in ("valu", "ds", "vmem"):
            if D & (c.uses | c.defs):
                need = max(need, long_)
            if c.cls == "valu" and C & c.defs:
                need = max(need, 7 if passes == 8 else 3)
    return need


def check_trace(tr, name=""):
    errs = []
    window = []
    vmq, lgq = [], []
    epoch = 0
    level = 0
    events = []
    seen = set()

    def err(msg, ins):
        key = (msg.split(" reg ")[0], ins.line)
        if key not in seen:
            seen.add(key)
            errs.append(f"[{name}] {msg} @ {ins}")

    def retire(q, n, idx):
        while len(q) > n:
            e = q.pop(0)
            for ev in e["ev"]:
                ev[3] = epoch
                ev[5] = idx

    for idx, (ins, snap) in enumerate(tr):
        dist = 0
        for p in reversed(window):
            need = hazard_need(p, ins)
            if need > dist:
                err(f"hazard: needs {need} wait states after '{p.text}' (line {p.line}), has {dist}", ins)
            dist += states(p)
            if dist >= 20:
                break
        window.append(ins)
        if len(window) > 24:
            window.pop(0)
        if ins.op == "s_waitcnt":
            m = re.search(r"vmcnt\((\d+)\)", ins.text)
            if m:
                retire(vmq, int(m.group(1)), idx)
            m = re.search(r"lgkmcnt\((\d+)\)", ins.text)
            if m:
                n = int(m.group(1))
                if any(e["smem"] for e in lgq):
                    if n == 0:
                        retire(lgq, 0, idx)
                else:
                    retire(lgq, n, idx)
            continue
        if ins.op == "s_barrier" and "pace" in ins.ann:
            continue
        if ins.op == "s_barrier":
            epoch += 1
            level = epoch
            continue
        if "arrive" in ins.ann:
            epoch += 1
        if "check" in ins.ann:
            level = epoch - int(ins.ann["check"][0] or 0)
        touched = ins.uses | ins.defs
        for q, nm in ((vmq, "vmcnt"), (lgq, "lgkmcnt")):
            for e in q:
                hit = e["dst"] & touched
                if hit and not ("dummy" in ins.ann and "dummy" in e["ins"].ann):
                    err(f"missing {nm} wait for '{e['ins'].text}' (line {e['ins'].line}) reg {sorted(hit)[:2]}", ins)
        evs = []
        for kind in ("dma", "rd", "wr", "pdma", "prd"):
            for t in snap.get(kind, []):
                if "?" in t:
                    err(f"unresolved tag {t}", ins)
                ev = [kind, t, level, None, idx, None, ins]
                evs.append(ev)
                events.append(ev)
        if ins.cls == "vmem":
            vmq.append({"dst": ins.defs, "ins": ins, "ev": evs})
            if len(vmq) > 63:
                err("more than 63 outstanding vmem ops", ins)
        elif ins.cls == "ds":
            lgq.append({"dst": ins.defs, "ins": ins, "ev": evs, "smem": False})
        elif ins.cls == "smem":
            lgq.append({"dst": ins.defs, "ins": ins, "ev": evs, "smem": True})
    for ev in events:
        if ev[3] is None:
            ev[3] = 10**9
            ev[5] = 10**9
    priv = {}
    for ev in events:
        if ev[0] in ("pdma", "prd"):
            priv.setdefault(ev[1], []).append(ev)
    for t, lst in priv.items():
        for a, b in zip(lst, lst[1:]):
            pass
        last_w, last_r = [], []
        for ev in lst:
            if ev[0] == "prd":
                for w in last_w:
                    if w[5] > ev[4]:
                        err(f"private slot {t}: read before write retired (line {w[6].line})", ev[6])
                last_r.append(ev)
            else:
                for r in last_r:
                    if r[5] > ev[4]:
                        err(f"private slot {t}: overwrite before read retired (line {r[6].line})", ev[6])
                last_r = []
                last_w = [w for w in last_w if w[5] > ev[4]] + [ev]
    return errs, [e for e in events if e[0] in ("dma", "rd", "wr")], epoch


def check_shared(all_events):
    errs = []
    by = {}
    for wv, evs in enumerate(all_events):
        for e in evs:
            by.setdefault(e[1], []).append((wv, e))
    seen = set()
    for t, lst in by.items():
        W = {(e[2], e[3], e[6].line) for _, e in lst if e[0] != "rd"}
        Rr = {(e[2], e[3], e[6].line) for _, e in lst if e[0] == "rd"}
        for wi, wr_, wl in W:
            for ri, rr, rl in Rr:
                if not (wr_ < ri or rr < wi):
                    key = (t.split(":")[0], wl, rl)
                    if key not in seen:
                        seen.add(key)
                        errs.append(f"shared slot {t}: write line {wl} (issue epoch {wi}, retired {wr_}) vs read line {rl} (issue {ri}, retired {rr})")
    return errs


def check_kernel(text, label, scenarios, early_exit=False):
    prog, labels = parse_kernel(text, label)
    errs = []
    stats = []
    for sc in scenarios:
        wg, nwaves, takes = sc[0], sc[1], sc[2]
        extra = sc[3] if len(sc) > 3 else {}
        evs, epochs = [], []
        for w in range(nwaves):
            vals = {"wave": w}
            vals.update(extra)
            tr = trace(prog, labels, wg, vals, takes)
            e, ev, ep = check_trace(tr, f"{label} wg{wg} w{w}")
            errs += e
            evs.append(ev)
            epochs.append(ep)
            stats.append((wg, w, len(tr), ep))
        groups = [epochs[:4], epochs[4:]] if early_exit else [epochs]
        if any(len(set(g)) > 1 for g in groups):
            errs.append(f"[{label} wg{wg}] barrier counts differ between waves: {epochs}")
        errs += check_shared(evs)
    uniq = list({re.sub(r'^\[[^]]*\]', '', x): x for x in reversed(errs)}.values())[::-1]
    return uniq, stats
```

```python
import math
import struct
from asmlib import *

QN = 0
KN = QN + 64 * 36 * 1024
VT = KN + 64 * 36 * 1024
VT_KG = 37 * 512
ZT = VT + 128 * VT_KG
ZT_KG = 144 * 512
Z1 = ZT + 128 * ZT_KG
AN = Z1 + 64 * 144 * 1024
AN_T = 90 * 1024
SP = AN + 128 * AN_T
RSC = SP + 16 * 16 * 1024
SYNC = RSC + 2048 * 4
WS_END = SYNC + 192 * 256

STAMPS = WS_END
import os
STAMP = int(os.environ.get('STAMP', '0'))
WS_SIZE = WS_END + (3 * 264 * 8 * 256 if STAMP else 0)

LOG2E = 1.4426950408889634
GA = 2.0 * math.sqrt(2.0 / math.pi) * LOG2E
GB = GA * 0.044715


def f32(x):
    return "0x%08x" % struct.unpack("<I", struct.pack("<f", x))[0]


class Q:
    def __init__(self, limit):
        self.q = []
        self.limit = limit

    def copy(self):
        c = Q(self.limit)
        c.q = list(self.q)
        return c

    def push(self, tag):
        self.q.append(tag)

    def need(self, tags):
        tags = set(tags)
        last = -1
        for i, t in enumerate(self.q):
            if t in tags:
                last = i
        if last < 0:
            return None
        rest = self.q[last + 1:]
        n = sum(1 for t in rest if not t.startswith(("*", "#")))
        assert n <= self.limit or self.limit == 15
        if n > self.limit:
            rest = rest[n - self.limit:]
            n = self.limit
        self.q = rest
        return n


class Emit:
    def __init__(self, a=None):
        self.a = a or Asm()
        self.vm = Q(63)
        self.lg = Q(15)

    def fork(self):
        e = Emit(self.a)
        e.vm = self.vm.copy()
        e.lg = self.lg.copy()
        return e

    def I(self, s):
        self.a.I(s)

    def L(self, s):
        self.a.L(s)

    def ds(self, s, tag):
        self.a.I(s)
        self.lg.push(tag)

    def vmem(self, s, tag):
        self.a.I(s)
        self.vm.push(tag)

    def wait(self, vm=(), lg=()):
        parts = []
        n = self.vm.need(vm) if vm else None
        if n is not None:
            parts.append(f"vmcnt({n})")
        n = self.lg.need(lg) if lg else None
        if n is not None:
            parts.append(f"lgkmcnt({n})")
        if parts:
            self.a.I("s_waitcnt " + " ".join(parts))
            return True
        return False

    def item(self, it):
        if isinstance(it, str):
            self.I(it)
        elif it[0] == "ds":
            self.ds(it[1], it[2])
        elif it[0] == "vm":
            self.vmem(it[1], it[2])
        elif it[0] == "wait":
            self.wait(it[1], it[2])
        elif it[0] == "mark":
            self.vm.push(it[1])
        elif it[0] == "raw":
            for ln in it[1]:
                if ln.endswith(":"):
                    self.L(ln[:-1])
                else:
                    self.I(ln)
        else:
            raise ValueError(it)


def srd(e, d, base, nbytes):
    e.I(f"s_mov_b32 s{d}, s{base}")
    e.I(f"s_and_b32 s{d + 1}, s{base + 1}, 0xffff")
    e.I(f"s_mov_b32 s{d + 2}, {nbytes}")
    e.I(f"s_mov_b32 s{d + 3}, 0x20000")


def kd(name, vgpr, acc, sgpr=102):
    return f""".p2align 6
.amdhsa_kernel {name}
  .amdhsa_next_free_vgpr {vgpr}
  .amdhsa_next_free_sgpr {sgpr}
  .amdhsa_accum_offset {acc}
  .amdhsa_group_segment_fixed_size 0
  .amdhsa_kernarg_size 88
  .amdhsa_user_sgpr_count 2
  .amdhsa_user_sgpr_kernarg_segment_ptr 1
  .amdhsa_system_sgpr_workgroup_id_x 1
.end_amdhsa_kernel
"""


def khead(a, name):
    a.raw(f".globl {name}")
    a.raw(".p2align 8")
    a.raw(f".type {name},@function")
    a.L(name)


class Stamper:
    def __init__(self, vreg, stmp):
        self.v, self.s, self.n = vreg, stmp, 0
        self.names = []

    def mark(self, e, name, real=False):
        if not STAMP:
            return
        e.I(f"{'s_memrealtime' if real else 's_memtime'} s[{self.s}:{self.s + 1}]")
        e.I("s_waitcnt lgkmcnt(0)")
        e.lg.q = []
        e.I(f"v_writelane_b32 v{self.v}, s{self.s}, {self.n}")
        self.names.append(name)
        self.n += 1

    def fork(self):
        c = Stamper(self.v, self.s)
        c.n = self.n
        c.names = list(self.names)
        return c

    def flush(self, e, kidx, s_ws, s_wave, vtmp, vlane):
        if not STAMP:
            return
        e.I(f"s_lshl_b32 s{self.s}, s2, 3")
        e.I(f"s_add_u32 s{self.s}, s{self.s}, s{s_wave}")
        e.I(f"s_lshl_b32 s{self.s}, s{self.s}, 8")
        e.I(f"s_add_u32 s{self.s}, s{self.s}, {STAMPS + kidx * 264 * 8 * 256}")
        e.I(f"v_lshlrev_b32 v{vtmp}, 2, v{vlane}")
        e.I(f"buffer_store_dword v{self.v}, v{vtmp}, s[{s_ws}:{s_ws + 3}], s{self.s} offen")


CODEPF = int(os.environ.get("CODEPF", "1"))


def code_prefetch(e, tag, first, last, per_wg, vtmp, vdum, stmp):
    if not CODEPF:
        return
    I = e.I
    I(f"s_getpc_b64 s[{stmp}:{stmp + 1}]")
    e.L(f"Lpc_{tag}")
    I(f"s_lshr_b32 s{stmp + 2}, s2, 3")
    I(f"s_mul_i32 s{stmp + 2}, s{stmp + 2}, {per_wg}")
    I(f"v_add_lshl_u32 v{vtmp}, v0, s{stmp + 2}, 7")
    I(f"s_sub_u32 s{stmp}, s{stmp}, Lpc_{tag}-{first}")
    I(f"s_subb_u32 s{stmp + 1}, s{stmp + 1}, 0")
    I(f"v_min_u32 v{vtmp}, {last}-{first}-4, v{vtmp}")
    I(f"v_cmp_gt_u32 s[{stmp + 2}:{stmp + 3}], {per_wg}, v0")
    I(f"v_mov_b32 v{vtmp + 1}, s{stmp + 1}")
    I(f"v_add_co_u32 v{vtmp}, vcc, s{stmp}, v{vtmp}")
    I("s_nop 1")
    I(f"v_addc_co_u32 v{vtmp + 1}, vcc, 0, v{vtmp + 1}, vcc")
    I(f"s_and_saveexec_b64 s[{stmp}:{stmp + 1}], s[{stmp + 2}:{stmp + 3}]")
    I(f"s_cbranch_execz Lpcs_{tag}")
    I(f"global_load_dword v{vdum}, v[{vtmp}:{vtmp + 1}], off ; @dummy")
    e.L(f"Lpcs_{tag}")
    I(f"s_mov_b64 exec, s[{stmp}:{stmp + 1}]")


SPINSLEEP = int(os.environ.get('SPINSLEEP', '0'))


def soft_arrive(vaddr, vone):
    return ("ds", f"ds_add_u32 v{vaddr}, v{vone} ; @arrive", "arr")


def soft_read(vdst, vaddr):
    return ("ds", f"ds_read_b32 v{vdst}, v{vaddr}", "prog")


def soft_check(e, uid, vdst, sthr, lag, spins):
    e.wait(lg=["prog"])
    e.I(f"v_cmp_gt_u32 vcc, s{sthr}, v{vdst}")
    e.I("s_nop 0")
    e.I(f"s_cbranch_vccnz Lspin_{uid}")
    e.L(f"Lspun_{uid}")
    spins.append(uid)


def soft_spins(e, spins, vdst, vaddr, sthr, stmp):
    for uid in spins:
        e.L(f"Lspin_{uid}")
        e.I(f"s_mov_b32 s{stmp}, 0x1000000")
        e.L(f"Lspin_{uid}_l")
        if SPINSLEEP:
            e.I(f"s_sleep {SPINSLEEP}")
        e.I(f"ds_read_b32 v{vdst}, v{vaddr}")
        e.I("s_waitcnt lgkmcnt(0)")
        e.I(f"v_cmp_gt_u32 vcc, s{sthr}, v{vdst}")
        e.I(f"s_sub_u32 s{stmp}, s{stmp}, 1")
        e.I(f"s_cbranch_scc1 Lspun_{uid}")
        e.I(f"s_cbranch_vccnz Lspin_{uid}_l")
        e.I(f"s_branch Lspun_{uid}")
```

```python
import math
import struct
from asmlib import *

import os
QN = int(os.environ.get('WSOFF', '0')) << 20
KN = QN + 64 * 36 * 1024
VT = KN + 64 * 36 * 1024
VT_KG = 37 * 512
ZT = VT + 128 * VT_KG
ZT_KG = 144 * 512
Z1 = ZT + 128 * ZT_KG
AN = Z1 + 64 * 144 * 1024
AN_T = 90 * 1024
SP = AN + 128 * AN_T
RSC = SP + 16 * 16 * 1024
SYNC = RSC + 2048 * 4
WS_END = SYNC + 192 * 256

STAMPS = WS_END
import os
STAMP = int(os.environ.get('STAMP', '0'))
WS_SIZE = WS_END + (3 * 264 * 8 * 256 if STAMP else 0)

LOG2E = 1.4426950408889634
GA = 2.0 * math.sqrt(2.0 / math.pi) * LOG2E
GB = GA * 0.044715


def f32(x):
    return "0x%08x" % struct.unpack("<I", struct.pack("<f", x))[0]


class Q:
    def __init__(self, limit):
        self.q = []
        self.limit = limit

    def copy(self):
        c = Q(self.limit)
        c.q = list(self.q)
        return c

    def push(self, tag):
        self.q.append(tag)

    def need(self, tags):
        tags = set(tags)
        last = -1
        for i, t in enumerate(self.q):
            if t in tags:
                last = i
        if last < 0:
            return None
        rest = self.q[last + 1:]
        n = sum(1 for t in rest if not t.startswith(("*", "#")))
        assert n <= self.limit or self.limit == 15
        if n > self.limit:
            rest = rest[n - self.limit:]
            n = self.limit
        self.q = rest
        return n


class Emit:
    def __init__(self, a=None):
        self.a = a or Asm()
        self.vm = Q(63)
        self.lg = Q(15)

    def fork(self):
        e = Emit(self.a)
        e.vm = self.vm.copy()
        e.lg = self.lg.copy()
        return e

    def I(self, s):
        self.a.I(s)

    def L(self, s):
        self.a.L(s)

    def ds(self, s, tag):
        self.a.I(s)
        self.lg.push(tag)

    def vmem(self, s, tag):
        self.a.I(s)
        self.vm.push(tag)

    def wait(self, vm=(), lg=()):
        parts = []
        n = self.vm.need(vm) if vm else None
        if n is not None:
            parts.append(f"vmcnt({n})")
        n = self.lg.need(lg) if lg else None
        if n is not None:
            parts.append(f"lgkmcnt({n})")
        if parts:
            self.a.I("s_waitcnt " + " ".join(parts))
            return True
        return False

    def item(self, it):
        if isinstance(it, str):
            self.I(it)
        elif it[0] == "ds":
            self.ds(it[1], it[2])
        elif it[0] == "vm":
            self.vmem(it[1], it[2])
        elif it[0] == "wait":
            self.wait(it[1], it[2])
        elif it[0] == "mark":
            self.vm.push(it[1])
        elif it[0] == "raw":
            for ln in it[1]:
                if ln.endswith(":"):
                    self.L(ln[:-1])
                else:
                    self.I(ln)
        else:
            raise ValueError(it)


def srd(e, d, base, nbytes):
    e.I(f"s_mov_b32 s{d}, s{base}")
    e.I(f"s_and_b32 s{d + 1}, s{base + 1}, 0xffff")
    e.I(f"s_mov_b32 s{d + 2}, {nbytes}")
    e.I(f"s_mov_b32 s{d + 3}, 0x20000")


def kd(name, vgpr, acc, sgpr=102):
    return f""".p2align 6
.amdhsa_kernel {name}
  .amdhsa_next_free_vgpr {vgpr}
  .amdhsa_next_free_sgpr {sgpr}
  .amdhsa_accum_offset {acc}
  .amdhsa_group_segment_fixed_size 0
  .amdhsa_kernarg_size 88
  .amdhsa_user_sgpr_count 2
  .amdhsa_user_sgpr_kernarg_segment_ptr 1
  .amdhsa_system_sgpr_workgroup_id_x 1
.end_amdhsa_kernel
"""


def khead(a, name):
    a.raw(f".globl {name}")
    a.raw(".p2align 8")
    a.raw(f".type {name},@function")
    a.L(name)


class Stamper:
    def __init__(self, vreg, stmp):
        self.v, self.s, self.n = vreg, stmp, 0
        self.names = []

    def mark(self, e, name, real=False):
        if not STAMP or (STAMP == 2 and not real):
            return
        e.I(f"{'s_memrealtime' if real else 's_memtime'} s[{self.s}:{self.s + 1}]")
        e.I("s_waitcnt lgkmcnt(0)")
        e.lg.q = []
        e.I(f"v_writelane_b32 v{self.v}, s{self.s}, {self.n}")
        self.names.append(name)
        self.n += 1

    def fork(self):
        c = Stamper(self.v, self.s)
        c.n = self.n
        c.names = list(self.names)
        return c

    def flush(self, e, kidx, s_ws, s_wave, vtmp, vlane):
        if not STAMP:
            return
        e.I(f"s_lshl_b32 s{self.s}, s2, 3")
        e.I(f"s_add_u32 s{self.s}, s{self.s}, s{s_wave}")
        e.I(f"s_lshl_b32 s{self.s}, s{self.s}, 8")
        e.I(f"s_add_u32 s{self.s}, s{self.s}, {STAMPS + kidx * 264 * 8 * 256}")
        e.I(f"v_lshlrev_b32 v{vtmp}, 2, v{vlane}")
        e.I(f"buffer_store_dword v{self.v}, v{vtmp}, s[{s_ws}:{s_ws + 3}], s{self.s} offen")


CODEPF = int(os.environ.get("CODEPF", "1"))


def code_prefetch(e, tag, first, last, per_wg, vtmp, vdum, stmp, vid=0, back=True):
    if not CODEPF:
        return
    I = e.I
    I(f"s_getpc_b64 s[{stmp}:{stmp + 1}]")
    e.L(f"Lpc_{tag}")
    I(f"s_lshr_b32 s{stmp + 2}, s2, 3")
    I(f"s_mul_i32 s{stmp + 2}, s{stmp + 2}, {per_wg}")
    I(f"v_add_lshl_u32 v{vtmp}, v{vid}, s{stmp + 2}, 7")
    if back:
        I(f"s_sub_u32 s{stmp}, s{stmp}, Lpc_{tag}-{first}")
        I(f"s_subb_u32 s{stmp + 1}, s{stmp + 1}, 0")
    else:
        I(f"s_add_u32 s{stmp}, s{stmp}, {first}-Lpc_{tag}")
        I(f"s_addc_u32 s{stmp + 1}, s{stmp + 1}, 0")
    I(f"v_min_u32 v{vtmp}, {last}-{first}-4, v{vtmp}")
    I(f"v_cmp_gt_u32 s[{stmp + 2}:{stmp + 3}], {per_wg}, v{vid}")
    I(f"v_mov_b32 v{vtmp + 1}, s{stmp + 1}")
    I(f"v_add_co_u32 v{vtmp}, vcc, s{stmp}, v{vtmp}")
    I("s_nop 1")
    I(f"v_addc_co_u32 v{vtmp + 1}, vcc, 0, v{vtmp + 1}, vcc")
    I(f"s_and_saveexec_b64 s[{stmp}:{stmp + 1}], s[{stmp + 2}:{stmp + 3}]")
    I(f"s_cbranch_execz Lpcs_{tag}")
    I(f"global_load_dword v{vdum}, v[{vtmp}:{vtmp + 1}], off ; @dummy")
    e.L(f"Lpcs_{tag}")
    I(f"s_mov_b64 exec, s[{stmp}:{stmp + 1}]")


SPINSLEEP = int(os.environ.get('SPINSLEEP', '0'))


def soft_arrive(vaddr, vone):
    return ("ds", f"ds_add_u32 v{vaddr}, v{vone} ; @arrive", "arr")


def soft_read(vdst, vaddr):
    return ("ds", f"ds_read_b32 v{vdst}, v{vaddr}", "prog")


def soft_check(e, uid, vdst, sthr, lag, spins):
    e.wait(lg=["prog"])
    e.I(f"v_cmp_gt_u32 vcc, s{sthr}, v{vdst}")
    e.I("s_nop 0")
    e.I(f"s_cbranch_vccnz Lspin_{uid}")
    e.L(f"Lspun_{uid}")
    spins.append(uid)


def soft_spins(e, spins, vdst, vaddr, sthr, stmp):
    for uid in spins:
        e.L(f"Lspin_{uid}")
        e.I(f"s_mov_b32 s{stmp}, 0x1000000")
        e.L(f"Lspin_{uid}_l")
        if SPINSLEEP:
            e.I(f"s_sleep {SPINSLEEP}")
        e.I(f"ds_read_b32 v{vdst}, v{vaddr}")
        e.I("s_waitcnt lgkmcnt(0)")
        e.I(f"v_cmp_gt_u32 vcc, s{sthr}, v{vdst}")
        e.I(f"s_sub_u32 s{stmp}, s{stmp}, 1")
        e.I(f"s_cbranch_scc1 Lspun_{uid}")
        e.I(f"s_cbranch_vccnz Lspin_{uid}_l")
        e.I(f"s_branch Lspun_{uid}")
```

```python
import re


class Asm:
    def __init__(self):
        self.lines = []

    def I(self, s):
        for ln in s.split("\n"):
            ln = ln.strip()
            if ln:
                self.lines.append("    " + ln)

    def L(self, name):
        self.lines.append(name + ":")

    def raw(self, s):
        self.lines.append(s)

    def extend(self, items):
        for it in items:
            self.I(it)

    def text(self):
        return "\n".join(self.lines) + "\n"


def vr(base, n=1, p="v"):
    return f"{p}{base}" if n == 1 else f"{p}[{base}:{base + n - 1}]"


def ar(base, n=1):
    return vr(base, n, "a")


def sr(base, n=1):
    return vr(base, n, "s")


TRANS = ("v_exp_f32", "v_rcp_f32", "v_rsq_f32", "v_sqrt_f32", "v_log_f32")


def cost(ins):
    op = ins.split()[0]
    if op.startswith(TRANS):
        return 2
    return 1


def spread(stream, ngaps, first=0, last=None):
    last = ngaps - 1 if last is None else last
    out = [[] for _ in range(ngaps)]
    total = sum(cost(i) for i in stream)
    n = last - first + 1
    acc = 0
    for ins in stream:
        g = first + min(n - 1, int(acc * n / total)) if total else first
        out[g].append(ins)
        acc += cost(ins)
    return out


REG = re.compile(r"^(-|abs\()?([vas])(\d+)\)?$|^(-|abs\()?([vas])\[(\d+):(\d+)\]\)?$")


def regs_of(tok):
    tok = tok.strip().strip("|")
    if tok in ("vcc", "exec"):
        return {tok}
    if tok in ("vcc_lo", "vcc_hi"):
        return {"vcc"}
    if tok in ("exec_lo", "exec_hi"):
        return {"exec"}
    if tok == "m0":
        return {"m0"}
    m = REG.match(tok)
    if not m:
        return set()
    if m.group(2):
        return {m.group(2) + m.group(3)}
    return {m.group(5) + str(i) for i in range(int(m.group(6)), int(m.group(7)) + 1)}


class Ins:
    __slots__ = ("text", "op", "ops", "flags", "ann", "cls", "defs", "uses", "line", "extra")

    def __repr__(self):
        return f"{self.line}: {self.text}"


NODST_S = ("s_cmp", "s_cbranch", "s_branch", "s_waitcnt", "s_barrier", "s_nop", "s_setprio", "s_sleep", "s_endpgm", "s_bitcmp")


def parse_ins(line, lineno):
    body, _, cmt = line.partition(";")
    body = body.strip()
    ins = Ins()
    ins.text = body
    ins.line = lineno
    ins.ann = {}
    for m in re.finditer(r"@(\w+)(?:\s+([^@]*))?", cmt):
        ins.ann.setdefault(m.group(1), []).append((m.group(2) or "").strip())
    parts = body.split(None, 1)
    op = parts[0]
    for suf in ("_e32", "_e64"):
        if op.endswith(suf):
            op = op[: -len(suf)]
    ins.op = op
    rest = parts[1] if len(parts) > 1 else ""
    toks = [t.strip() for t in re.split(r",(?![^\[]*\])", rest)] if rest else []
    flags = []
    if toks:
        last = toks[-1].split()
        if len(last) > 1 and not op.startswith("s_waitcnt"):
            toks[-1] = last[0]
            flags = last[1:]
    ins.ops = toks
    ins.flags = flags
    R = [regs_of(t) for t in toks]
    d, u = set(), set()
    ins.extra = None
    if op.startswith("s_load") or op.startswith("s_memtime") or op.startswith("s_memrealtime"):
        ins.cls = "smem"
        d = R[0]
        u = set().union(*R[1:]) if len(R) > 1 else set()
    elif op.startswith("s_"):
        ins.cls = "salu"
        if op.startswith(NODST_S):
            u = set().union(*R) if R else set()
        else:
            d = set(R[0])
            u = set().union(*R[1:]) if len(R) > 1 else set()
            if "saveexec" in op:
                d |= {"exec"}
                u |= {"exec"}
    elif op.startswith("v_mfma"):
        ins.cls = "mfma"
        d = R[0]
        u = R[1] | R[2] | R[3]
        ins.extra = (R[0], R[1] | R[2], R[3], 8 if "32x32" in op else 4)
    elif op.startswith("v_"):
        ins.cls = "valu"
        d = set(R[0])
        u = set().union(*R[1:]) if len(R) > 1 else set()
        if op.startswith(("v_fmac", "v_dot2c", "v_writelane")) or "UNUSED_PRESERVE" in body:
            u |= R[0]
        if op.startswith("v_permlane") and "swap" in op:
            d = R[0] | R[1]
            u = R[0] | R[1]
        if op.startswith(("v_add_co", "v_sub_co", "v_addc_co", "v_subb_co")):
            d = R[0] | R[1]
            u = set().union(*R[2:])
        if op.startswith("v_cmpx"):
            d |= {"exec"}
    elif op.startswith("ds_"):
        ins.cls = "ds"
        if op.startswith(("ds_read", "ds_bpermute", "ds_permute", "ds_swizzle")) or "_rtn" in op:
            d = R[0]
            u = set().union(*R[1:])
        else:
            u = set().union(*R)
    elif op.startswith("global_load"):
        ins.cls = "vmem"
        d = R[0]
        u = set().union(*R[1:])
    elif op.startswith("buffer_"):
        ins.cls = "vmem"
        if op.startswith("buffer_load") and "lds" in flags:
            u = set().union(*R) | {"m0"}
            ins.extra = "dma"
        elif op.startswith("buffer_load"):
            d = R[0]
            u = set().union(*R[1:])
        elif op.startswith("buffer_atomic"):
            u = set().union(*R)
            if "sc0" in flags:
                d = R[0]
        elif op.startswith("buffer_store"):
            u = set().union(*R)
            ins.extra = ("store", R[0])
        else:
            pass
    else:
        raise ValueError(f"unknown instruction at line {lineno}: {body}")
    ins.defs, ins.uses = d, u
    return ins


def parse_kernel(text, label):
    lines = text.split("\n")
    start = next(i for i, l in enumerate(lines) if l.strip() == label + ":")
    prog, labels = [], {}
    for i in range(start + 1, len(lines)):
        l = lines[i].strip()
        if l.startswith((".section", ".globl")):
            break
        if not l or l.startswith(";") or l.startswith("."):
            if l.endswith(":") and not l.startswith(";"):
                labels[l[:-1]] = len(prog)
            continue
        if l.endswith(":"):
            labels[l[:-1]] = len(prog)
            continue
        prog.append(parse_ins(l, i + 1))
    return prog, labels


M32 = 0xFFFFFFFF


def trace(prog, labels, wg, vals, takes=None, maxlen=400000):
    s = {"s2": wg}
    scc = None
    pc = 0
    out = []
    takes = {k: list(v) for k, v in (takes or {}).items()}

    def val(tok):
        if tok in s:
            return s[tok]
        if re.match(r"^s\d+$|^m0$|^vcc|^exec", tok):
            return None
        try:
            return int(tok, 0) & M32
        except ValueError:
            return None

    while True:
        ins = prog[pc]
        snap = {a: [fmt_tag(t, s) for t in ins.ann[a]] for a in ins.ann if a in ("dma", "rd", "wr", "pdma", "prd")}
        out.append((ins, snap))
        if len(out) > maxlen:
            raise RuntimeError("trace too long (loop?)")
        op, o = ins.op, ins.ops
        nxt = pc + 1
        if op == "s_endpgm":
            return out
        if op == "s_branch":
            nxt = labels[o[0]]
        elif op.startswith("s_cbranch"):
            if "take" in ins.ann:
                nm = ins.ann["take"][0]
                lst = takes.get(nm, [0])
                t = lst.pop(0) if len(lst) > 1 else lst[0]
            elif op == "s_cbranch_scc1":
                assert scc is not None, f"unknown scc at {ins}"
                t = scc
            elif op == "s_cbranch_scc0":
                assert scc is not None, f"unknown scc at {ins}"
                t = not scc
            else:
                raise RuntimeError(f"branch needs @take: {ins}")
            if t:
                nxt = labels[o[0]]
        elif op.startswith("s_cmp"):
            a, b = val(o[0]), val(o[1])
            if a is None or b is None:
                scc = None
            else:
                k = op.split("_")[2]
                scc = {"eq": a == b, "lg": a != b, "lt": a < b, "le": a <= b, "gt": a > b, "ge": a >= b}[k]
        elif op.startswith("s_bitcmp1_b32"):
            a, b = val(o[0]), val(o[1])
            scc = None if a is None else bool(a >> b & 1)
        elif ins.cls == "salu" and ins.defs:
            a = val(o[1]) if len(o) > 1 else None
            b = val(o[2]) if len(o) > 2 else None
            r = None
            if op == "s_mov_b32":
                r = a
            elif op == "s_cselect_b32":
                r = None if scc is None else (a if scc else b)
            elif a is not None and b is not None:
                f = {
                    "s_add_u32": lambda: a + b, "s_sub_u32": lambda: a - b, "s_add_i32": lambda: a + b, "s_sub_i32": lambda: a - b,
                    "s_mul_i32": lambda: a * b, "s_lshl_b32": lambda: a << (b & 31), "s_lshr_b32": lambda: a >> (b & 31),
                    "s_and_b32": lambda: a & b, "s_or_b32": lambda: a | b, "s_xor_b32": lambda: a ^ b,
                    "s_min_u32": lambda: min(a, b), "s_max_u32": lambda: max(a, b), "s_mul_hi_u32": lambda: (a * b) >> 32,
                    "s_bfe_u32": lambda: (a >> (b & 31)) & ((1 << (b >> 16 & 127)) - 1),
                }.get(op)
                if f:
                    full = f()
                    r = full & M32
                    if op == "s_add_u32":
                        scc = full > M32
                    elif op == "s_sub_u32":
                        scc = full < 0
                    elif op in ("s_and_b32", "s_or_b32", "s_xor_b32", "s_lshl_b32", "s_lshr_b32", "s_bfe_u32"):
                        scc = r != 0
                    elif op in ("s_min_u32", "s_max_u32"):
                        scc = None
            else:
                if op not in ("s_mov_b64", "s_mul_i32", "s_mul_hi_u32"):
                    scc = None
            for d in ins.defs:
                s.pop(d, None)
            if r is not None and len(ins.defs) == 1:
                s[next(iter(ins.defs))] = r
        else:
            for d in ins.defs:
                s.pop(d, None)
            if "val" in ins.ann:
                s[o[0]] = vals[ins.ann["val"][0]]
        pc = nxt


def fmt_tag(t, s):
    return re.sub(r"\{(\w+)\}", lambda m: str(s.get(m.group(1), "?")), t)


def states(ins):
    if ins.op == "s_nop":
        return int(ins.ops[0], 0) + 1
    return 1


def is_sg(r):
    return r[0] == "s" or r == "vcc"


def hazard_need(p, c):
    need = 0
    pv = p.cls == "valu"
    if pv:
        w = p.defs
        if c.cls == "mfma" and w & c.uses:
            need = max(need, 2)
        if c.cls == "mfma" and "exec" in w:
            need = max(need, 4)
        sg = {r for r in w if is_sg(r)}
        if sg:
            if c.cls == "vmem" and sg & c.uses:
                need = max(need, 5)
            if c.cls == "valu" and (sg & c.uses or ("vcc" in sg and c.op.startswith(("v_cndmask", "v_addc", "v_subb")) and "vcc" in c.text)):
                need = max(need, 4 if c.op.startswith(("v_readlane", "v_writelane")) else 2)
            if c.cls == "salu" and sg & c.uses:
                need = max(need, 1)
            if c.op in ("s_cbranch_vccz", "s_cbranch_vccnz") and "vcc" in sg:
                need = max(need, 1)
        if c.op.startswith(("v_readfirstlane", "v_readlane")) and w & c.uses:
            need = max(need, 1)
        if c.op.startswith("v_permlane") and w & c.uses:
            need = max(need, 2)
        if c.cls == "valu" and ("dpp" in c.op or "row_" in c.text) and w & c.uses:
            need = max(need, 2)
        if p.op.startswith(TRANS) and c.cls == "valu" and w & c.uses:
            need = max(need, 1)
        if p.op.startswith("v_dot2") and c.cls in ("valu", "mfma", "ds", "vmem") and w & (c.uses | c.defs):
            same = c.op == p.op and not (w & (c.uses - regs_of(c.ops[-1]) - (c.defs if p.op.startswith("v_dot2c") else set())))
            need = max(need, 0 if same else 3)
        if "sdwa" in p.op and c.cls == "valu" and w & (c.uses | c.defs):
            need = max(need, 1)
        if p.op.startswith("v_cmpx") and c.op.startswith(("v_readlane", "v_readfirstlane", "v_permlane")):
            need = max(need, 4)
    if p.cls == "salu" and "m0" in p.defs and c.extra == "dma":
        need = max(need, 1)
    if p.cls == "vmem" and isinstance(p.extra, tuple) and len(p.extra[1]) >= 3:
        if c.defs & p.extra[1]:
            need = max(need, 2 if c.cls in ("valu", "mfma") else 1)
    if p.cls == "mfma":
        D, AB, C, passes = p.extra
        long_ = 12 if passes == 8 else 8
        if c.cls == "mfma":
            D2, AB2, C2, passes2 = c.extra
            if D & AB2:
                need = max(need, long_)
            if D & C2 and not (D == C2 and passes == passes2):
                need = max(need, 10 if passes == 8 else 6)
            if D & D2 and not (D & C2):
                need = max(need, 0)
        elif c.cls in ("valu", "ds", "vmem"):
            if D & (c.uses | c.defs):
                need = max(need, long_)
            if c.cls == "valu" and C & c.defs:
                need = max(need, 7 if passes == 8 else 3)
    return need


def check_trace(tr, name=""):
    errs = []
    window = []
    vmq, lgq = [], []
    epoch = 0
    level = 0
    nbar = 0
    events = []
    seen = set()

    def err(msg, ins):
        key = (msg.split(" reg ")[0], ins.line)
        if key not in seen:
            seen.add(key)
            errs.append(f"[{name}] {msg} @ {ins}")

    def retire(q, n, idx):
        while len(q) > n:
            e = q.pop(0)
            for ev in e["ev"]:
                ev[3] = nbar if ev[1].startswith("kv") else epoch
                ev[5] = idx

    for idx, (ins, snap) in enumerate(tr):
        dist = 0
        for p in reversed(window):
            need = hazard_need(p, ins)
            if need > dist:
                err(f"hazard: needs {need} wait states after '{p.text}' (line {p.line}), has {dist}", ins)
            dist += states(p)
            if dist >= 20:
                break
        window.append(ins)
        if len(window) > 24:
            window.pop(0)
        if ins.op == "s_waitcnt":
            m = re.search(r"vmcnt\((\d+)\)", ins.text)
            if m:
                retire(vmq, int(m.group(1)), idx)
            m = re.search(r"lgkmcnt\((\d+)\)", ins.text)
            if m:
                n = int(m.group(1))
                if any(e["smem"] for e in lgq):
                    if n == 0:
                        retire(lgq, 0, idx)
                else:
                    retire(lgq, n, idx)
            continue
        if ins.op == "s_barrier" and "pace" in ins.ann:
            continue
        if ins.op == "s_barrier":
            epoch += 1
            nbar += 1
            level = epoch
            continue
        if "arrive" in ins.ann:
            epoch += 1
        if "check" in ins.ann:
            level = epoch - int(ins.ann["check"][0] or 0)
        touched = ins.uses | ins.defs
        for q, nm in ((vmq, "vmcnt"), (lgq, "lgkmcnt")):
            for e in q:
                hit = e["dst"] & touched
                if hit and not ("dummy" in ins.ann and "dummy" in e["ins"].ann):
                    err(f"missing {nm} wait for '{e['ins'].text}' (line {e['ins'].line}) reg {sorted(hit)[:2]}", ins)
        evs = []
        for kind in ("dma", "rd", "wr", "pdma", "prd"):
            for t in snap.get(kind, []):
                if "?" in t:
                    err(f"unresolved tag {t}", ins)
                ev = [kind, t, nbar if t.startswith('kv') else level, None, idx, None, ins]
                evs.append(ev)
                events.append(ev)
        if ins.cls == "vmem":
            vmq.append({"dst": ins.defs, "ins": ins, "ev": evs})
            if len(vmq) > 63:
                err("more than 63 outstanding vmem ops", ins)
        elif ins.cls == "ds":
            lgq.append({"dst": ins.defs, "ins": ins, "ev": evs, "smem": False})
        elif ins.cls == "smem":
            lgq.append({"dst": ins.defs, "ins": ins, "ev": evs, "smem": True})
    for ev in events:
        if ev[3] is None:
            ev[3] = 10**9
            ev[5] = 10**9
    priv = {}
    for ev in events:
        if ev[0] in ("pdma", "prd"):
            priv.setdefault(ev[1], []).append(ev)
    for t, lst in priv.items():
        for a, b in zip(lst, lst[1:]):
            pass
        last_w, last_r = [], []
        for ev in lst:
            if ev[0] == "prd":
                for w in last_w:
                    if w[5] > ev[4]:
                        err(f"private slot {t}: read before write retired (line {w[6].line})", ev[6])
                last_r.append(ev)
            else:
                for r in last_r:
                    if r[5] > ev[4]:
                        err(f"private slot {t}: overwrite before read retired (line {r[6].line})", ev[6])
                last_r = []
                last_w = [w for w in last_w if w[5] > ev[4]] + [ev]
    return errs, [e for e in events if e[0] in ("dma", "rd", "wr")], epoch


def check_shared(all_events):
    errs = []
    by = {}
    for wv, evs in enumerate(all_events):
        for e in evs:
            by.setdefault(e[1], []).append((wv, e))
    seen = set()
    for t, lst in by.items():
        W = {(e[2], e[3], e[6].line) for _, e in lst if e[0] != "rd"}
        Rr = {(e[2], e[3], e[6].line) for _, e in lst if e[0] == "rd"}
        for wi, wr_, wl in W:
            for ri, rr, rl in Rr:
                if not (wr_ < ri or rr < wi):
                    key = (t.split(":")[0], wl, rl)
                    if key not in seen:
                        seen.add(key)
                        errs.append(f"shared slot {t}: write line {wl} (issue epoch {wi}, retired {wr_}) vs read line {rl} (issue {ri}, retired {rr})")
    return errs


def check_kernel(text, label, scenarios, early_exit=False):
    prog, labels = parse_kernel(text, label)
    errs = []
    stats = []
    for sc in scenarios:
        wg, nwaves, takes = sc[0], sc[1], sc[2]
        extra = sc[3] if len(sc) > 3 else {}
        evs, epochs = [], []
        for w in range(nwaves):
            vals = {"wave": w}
            vals.update(extra)
            tr = trace(prog, labels, wg, vals, takes)
            e, ev, ep = check_trace(tr, f"{label} wg{wg} w{w}")
            errs += e
            evs.append(ev)
            epochs.append(ep)
            stats.append((wg, w, len(tr), ep))
        groups = [epochs[:4], epochs[4:]] if early_exit else [epochs]
        if any(len(set(g)) > 1 for g in groups):
            errs.append(f"[{label} wg{wg}] barrier counts differ between waves: {epochs}")
        errs += check_shared(evs)
    uniq = list({re.sub(r'^\[[^]]*\]', '', x): x for x in reversed(errs)}.values())[::-1]
    return uniq, stats
```

```python
import sys, importlib
from common import *
import asmlib

REF = "parallel_sum__mha_block__mixer_gmlp__prompt.s.ref"

DOC = """
;   layernorm of z2 (row statistics exchanged between the 16 workgroups of a row block through d_ws and a d_debug counter)
;   are woven between the MFMAs. Results go to d_ws in fragment order.
;   the spatial GEMM (128 x 144 tile), the gating, and, after counter hand-offs in d_ws (zeroed by k1_kernel), an 80 x 64
"""


def build(mods, check=True, verbose=True):
    ref = open(REF).read().split("\n")
    hdr = [l for l in ref if l.startswith(";") and "@launch" not in l and "Override launch" not in l and "grid=ceil" not in l]
    hdr = hdr[: next(i for i, l in enumerate(hdr) if "d_ws" in l) + 1]
    out = list(hdr)
    for m in mods:
        out.append(f"; @launch kernel={m.NAME} grid=({m.GRID},1,1) block=({m.BLOCK},1,1) lds={m.LDS}")
    out += DOC.strip("\n").split("\n")
    out.append('.amdgcn_target "amdgcn-amd-amdhsa--gfx950"')
    out.append(".text")
    a = Asm()
    for m in dict.fromkeys(mods):
        m.gen(a)
    text = "\n".join(out) + "\n" + a.text() + 'Lcode_end:\n.section .rodata,"a"\n'
    done = set()
    for m in mods:
        if m.NAME not in done:
            text += kd(m.NAME, m.NVGPR, m.ACCOFF)
            done.add(m.NAME)
    ok = True
    if check:
        for m in mods:
            errs, stats = asmlib.check_kernel(text, m.NAME, m.scenarios(), getattr(m, 'EARLY_EXIT', False))
            if verbose:
                print(m.NAME, "trace lengths/barriers:", [(s[0], s[2], s[3]) for s in stats if s[1] in (0, 4)])
            for er in errs[:40]:
                print("ERR", er)
            ok &= not errs
    return text, ok

def strip(text):
    out = []
    for l in text.split("\n"):
        if not l.startswith(";") and "; @" in l:
            l = l[: l.index("; @")].rstrip()
        out.append(l)
    return "\n".join(out)

if __name__ == "__main__":
    names = sys.argv[2].split(",")
    mods = [importlib.import_module(n) for n in names]
    text, ok = build(mods)
    open(sys.argv[1], "w").write(strip(text))
    print("written", sys.argv[1], len(strip(text)), "bytes", "CHECK OK" if ok else "CHECK FAILED")
```

```python
import math
import struct
from asmlib import *

import os
QN = int(os.environ.get('WSOFF', '0')) << 20
KN = QN + 64 * 36 * 1024
VT = KN + 64 * 36 * 1024
VT_KG = 37 * 512
ZT = VT + 128 * VT_KG
ZT_KG = 144 * 512
AN = ZT + 128 * ZT_KG + 64 * 144 * 1024
AN_T = 90 * 1024
INPLACE = int(os.environ.get('INPLACE', '1'))
Z1, Z1_T = (AN + 18 * 1024, AN_T) if INPLACE else (ZT + 128 * ZT_KG, 72 * 1024)
QOUT = int(os.environ.get('QOUT', '0'))
SP = AN + 128 * AN_T
RSC = SP + 16 * 16 * 1024
SYNC = RSC + 2048 * 4
WS_END = SYNC + 192 * 256

STAMPS = WS_END
import os
STAMP = int(os.environ.get('STAMP', '0'))
WS_SIZE = WS_END + (3 * 264 * 8 * 256 if STAMP else 0)

LOG2E = 1.4426950408889634
GA = 2.0 * math.sqrt(2.0 / math.pi) * LOG2E
GB = GA * 0.044715


def f32(x):
    return "0x%08x" % struct.unpack("<I", struct.pack("<f", x))[0]


class Q:
    def __init__(self, limit):
        self.q = []
        self.limit = limit

    def copy(self):
        c = Q(self.limit)
        c.q = list(self.q)
        return c

    def push(self, tag):
        self.q.append(tag)

    def need(self, tags):
        tags = set(tags)
        last = -1
        for i, t in enumerate(self.q):
            if t in tags:
                last = i
        if last < 0:
            return None
        rest = self.q[last + 1:]
        n = sum(1 for t in rest if not t.startswith(("*", "#")))
        assert n <= self.limit or self.limit == 15
        if n > self.limit:
            rest = rest[n - self.limit:]
            n = self.limit
        self.q = rest
        return n


class Emit:
    def __init__(self, a=None):
        self.a = a or Asm()
        self.vm = Q(63)
        self.lg = Q(15)

    def fork(self):
        e = Emit(self.a)
        e.vm = self.vm.copy()
        e.lg = self.lg.copy()
        return e

    def I(self, s):
        self.a.I(s)

    def L(self, s):
        self.a.L(s)

    def ds(self, s, tag):
        self.a.I(s)
        self.lg.push(tag)

    def vmem(self, s, tag):
        self.a.I(s)
        self.vm.push(tag)

    def wait(self, vm=(), lg=()):
        parts = []
        n = self.vm.need(vm) if vm else None
        if n is not None:
            parts.append(f"vmcnt({n})")
        n = self.lg.need(lg) if lg else None
        if n is not None:
            parts.append(f"lgkmcnt({n})")
        if parts:
            self.a.I("s_waitcnt " + " ".join(parts))
            return True
        return False

    def item(self, it):
        if isinstance(it, str):
            self.I(it)
        elif it[0] == "ds":
            self.ds(it[1], it[2])
        elif it[0] == "vm":
            self.vmem(it[1], it[2])
        elif it[0] == "wait":
            self.wait(it[1], it[2])
        elif it[0] == "mark":
            self.vm.push(it[1])
        elif it[0] == "raw":
            for ln in it[1]:
                if ln.endswith(":"):
                    self.L(ln[:-1])
                else:
                    self.I(ln)
        else:
            raise ValueError(it)


def srd(e, d, base, nbytes):
    e.I(f"s_mov_b32 s{d}, s{base}")
    e.I(f"s_and_b32 s{d + 1}, s{base + 1}, 0xffff")
    e.I(f"s_mov_b32 s{d + 2}, {nbytes}")
    e.I(f"s_mov_b32 s{d + 3}, 0x20000")


def kd(name, vgpr, acc, sgpr=102):
    return f""".p2align 6
.amdhsa_kernel {name}
  .amdhsa_next_free_vgpr {vgpr}
  .amdhsa_next_free_sgpr {sgpr}
  .amdhsa_accum_offset {acc}
  .amdhsa_group_segment_fixed_size 0
  .amdhsa_kernarg_size 88
  .amdhsa_user_sgpr_count 2
  .amdhsa_user_sgpr_kernarg_segment_ptr 1
  .amdhsa_system_sgpr_workgroup_id_x 1
.end_amdhsa_kernel
"""


def khead(a, name):
    a.raw(f".globl {name}")
    a.raw(".p2align 8")
    a.raw(f".type {name},@function")
    a.L(name)


class Stamper:
    def __init__(self, vreg, stmp):
        self.v, self.s, self.n = vreg, stmp, 0
        self.names = []

    def mark(self, e, name, real=False):
        if not STAMP or (STAMP == 2 and not real):
            return
        e.I(f"{'s_memrealtime' if real else 's_memtime'} s[{self.s}:{self.s + 1}]")
        e.I("s_waitcnt lgkmcnt(0)")
        e.lg.q = []
        e.I(f"v_writelane_b32 v{self.v}, s{self.s}, {self.n}")
        self.names.append(name)
        self.n += 1

    def fork(self):
        c = Stamper(self.v, self.s)
        c.n = self.n
        c.names = list(self.names)
        return c

    def flush(self, e, kidx, s_ws, s_wave, vtmp, vlane):
        if not STAMP:
            return
        e.I(f"s_lshl_b32 s{self.s}, s2, 3")
        e.I(f"s_add_u32 s{self.s}, s{self.s}, s{s_wave}")
        e.I(f"s_lshl_b32 s{self.s}, s{self.s}, 8")
        e.I(f"s_add_u32 s{self.s}, s{self.s}, {STAMPS + kidx * 264 * 8 * 256}")
        e.I(f"v_lshlrev_b32 v{vtmp}, 2, v{vlane}")
        e.I(f"buffer_store_dword v{self.v}, v{vtmp}, s[{s_ws}:{s_ws + 3}], s{self.s} offen")


CODEPF = int(os.environ.get("CODEPF", "1"))


def code_prefetch(e, tag, first, last, per_wg, vtmp, vdum, stmp, vid=0, back=True):
    if not CODEPF:
        return
    I = e.I
    I(f"s_getpc_b64 s[{stmp}:{stmp + 1}]")
    e.L(f"Lpc_{tag}")
    I(f"s_lshr_b32 s{stmp + 2}, s2, 3")
    I(f"s_mul_i32 s{stmp + 2}, s{stmp + 2}, {per_wg}")
    I(f"v_add_lshl_u32 v{vtmp}, v{vid}, s{stmp + 2}, 7")
    if back:
        I(f"s_sub_u32 s{stmp}, s{stmp}, Lpc_{tag}-{first}")
        I(f"s_subb_u32 s{stmp + 1}, s{stmp + 1}, 0")
    else:
        I(f"s_add_u32 s{stmp}, s{stmp}, {first}-Lpc_{tag}")
        I(f"s_addc_u32 s{stmp + 1}, s{stmp + 1}, 0")
    I(f"v_min_u32 v{vtmp}, {last}-{first}-4, v{vtmp}")
    I(f"v_cmp_gt_u32 s[{stmp + 2}:{stmp + 3}], {per_wg}, v{vid}")
    I(f"v_mov_b32 v{vtmp + 1}, s{stmp + 1}")
    I(f"v_add_co_u32 v{vtmp}, vcc, s{stmp}, v{vtmp}")
    I("s_nop 1")
    I(f"v_addc_co_u32 v{vtmp + 1}, vcc, 0, v{vtmp + 1}, vcc")
    I(f"s_and_saveexec_b64 s[{stmp}:{stmp + 1}], s[{stmp + 2}:{stmp + 3}]")
    I(f"s_cbranch_execz Lpcs_{tag}")
    I(f"global_load_dword v{vdum}, v[{vtmp}:{vtmp + 1}], off ; @dummy")
    e.L(f"Lpcs_{tag}")
    I(f"s_mov_b64 exec, s[{stmp}:{stmp + 1}]")


SPINSLEEP = int(os.environ.get('SPINSLEEP', '0'))


def soft_arrive(vaddr, vone):
    return ("ds", f"ds_add_u32 v{vaddr}, v{vone} ; @arrive", "arr")


def soft_read(vdst, vaddr):
    return ("ds", f"ds_read_b32 v{vdst}, v{vaddr}", "prog")


def soft_check(e, uid, vdst, sthr, lag, spins):
    e.wait(lg=["prog"])
    e.I(f"v_cmp_gt_u32 vcc, s{sthr}, v{vdst}")
    e.I("s_nop 0")
    e.I(f"s_cbranch_vccnz Lspin_{uid}")
    e.L(f"Lspun_{uid}")
    spins.append(uid)


def soft_spins(e, spins, vdst, vaddr, sthr, stmp):
    for uid in spins:
        e.L(f"Lspin_{uid}")
        e.I(f"s_mov_b32 s{stmp}, 0x1000000")
        e.L(f"Lspin_{uid}_l")
        if SPINSLEEP:
            e.I(f"s_sleep {SPINSLEEP}")
        e.I(f"ds_read_b32 v{vdst}, v{vaddr}")
        e.I("s_waitcnt lgkmcnt(0)")
        e.I(f"v_cmp_gt_u32 vcc, s{sthr}, v{vdst}")
        e.I(f"s_sub_u32 s{stmp}, s{stmp}, 1")
        e.I(f"s_cbranch_scc1 Lspun_{uid}")
        e.I(f"s_cbranch_vccnz Lspin_{uid}_l")
        e.I(f"s_branch Lspun_{uid}")
```
